```python
import torch

def _softmax(x, axis=-1):
    return torch.softmax(x, dim=axis)
def _gelu(x):
    return torch.nn.functional.gelu(x, approximate="tanh")
def _silu(x):
    return torch.nn.functional.silu(x)
def _sigmoid(x):
    return torch.sigmoid(x)
def _layernorm(x, axis=-1, eps=1e-5):
    m = x.mean(dim=axis, keepdim=True)
    v = x.var(dim=axis, keepdim=True, unbiased=False)
    return (x - m) / torch.sqrt(v + eps)
def _scatter_add(tgt, idx, src, axis=0):
    return tgt.clone().index_add_(axis, idx, src)
def _segment_sum(src, seg, n):
    out = torch.zeros((n,) + src.shape[1:], dtype=src.dtype)
    return out.index_add_(0, seg, src)
def _pad(x, pw):
    flat = tuple(v for pair in reversed(pw) for v in pair)
    return torch.nn.functional.pad(x, flat)

kernel_name = 'standalone__gqa_softmax__sampling'

def setup_inputs():

    _w = (lambda a: (lambda t: t.to(torch.bfloat16) if t.is_floating_point() else t)(torch.as_tensor(a)))
    B, Hq, Hkv, Sq, Sk, D = 8, 32, 8, 32, 2048, 128
    return {
        "q": _w((lambda *s: torch.randn(*s, dtype=torch.bfloat16) * 0.8)(B, Hq, Sq, D)),
        "k": _w((lambda *s: torch.randn(*s, dtype=torch.bfloat16) * 0.8)(B, Hkv, Sk, D)),
        "v": _w((lambda *s: torch.randn(*s, dtype=torch.bfloat16) * 0.05)(B, Hkv, Sk, D)),
    }

def reference(q, k, v):
    B, Hq, Sq, D = q.shape
    Hkv = k.shape[1]
    rep = Hq // Hkv
    k = (lambda x, n, axis: torch.repeat_interleave(x, n, dim=axis))(k, rep, axis=1)
    v = (lambda x, n, axis: torch.repeat_interleave(x, n, dim=axis))(v, rep, axis=1)
    scale = D ** -0.5
    scores = torch.einsum("bhqd,bhkd->bhqk", q, k) * scale
    p = _softmax(scores, axis=-1)
    return torch.einsum("bhqk,bhkd->bhqd", p, v)
```

```python
import sys, os
POL = os.environ.get("POL", "nt")
PPOL = os.environ.get("PPOL", "sc0 sc1")
LPOL = os.environ.get("LPOL", "sc1")
NOCOMB = int(os.environ.get("NOCOMB", "0"))

HEADER = """; Kernarg layout for this problem (48 bytes, ptrs only, base s[0:1]):
"""
out = []
def e(s=""):
    out.append(s)

Q0 = 16; KF = 48; VF = 80; SA = 112; SB = 128; P0 = 144; O0 = 160
KA = 224; VA = 232; DK0, DK1, DV = 236, 237, 238
VM, VL = 239, 240
T0 = 241
ML_OFF = 16 * 1024 * 1024
TICKET_LDS = 131072
NAME = "standalone__gqa_softmax__sampling_kernel"

def dma_k(t):
    e(f"  s_add_u32 s38, s37, {(t&3)*16384}")
    e("  s_mov_b32 m0, s38")
    e(f"  s_mov_b32 s39, {t*16384}")
    e(f"  buffer_load_dwordx4 v{DK0}, s[28:31], s39 offen {POL} lds")
    e(f"  buffer_load_dwordx4 v{DK1}, s[28:31], s39 offen offset:1024 {POL} lds")
def dma_v(t):
    e(f"  s_add_u32 s38, s37, {65536+(t&3)*16384}")
    e("  s_mov_b32 m0, s38")
    e(f"  s_mov_b32 s39, {t*16384}")
    e(f"  buffer_load_dwordx4 v{DV}, s[32:35], s39 offen {POL} lds")
    e(f"  buffer_load_dwordx4 v{DV}, s[32:35], s39 offen offset:1024 {POL} lds")

def top(i):
    n = {6: 6, 7: 2, 8: 0}.get(i, 8)
    e(f"  ; ---- interval {i} ----")
    e(f"  s_waitcnt vmcnt({n})")
    e("  s_barrier")
    if i + 3 <= 7: dma_k(i + 3)
    if i + 2 <= 7: dma_v(i + 2)

def phase1(t, lab):
    slot = (t & 3) * 16384
    for st in range(8):
        e(f"  ds_read_b128 v[{KF+4*st}:{KF+4*st+3}], v{KA+st} offset:{slot}")
    for st in range(8):
        e(f"  s_waitcnt lgkmcnt({7-st if True else 0})" if st == 0 else f"  s_waitcnt lgkmcnt(7)")
        c = "0" if st == 0 else f"v[{SA}:{SA+15}]"
        e(f"  v_mfma_f32_32x32x16_bf16 v[{SA}:{SA+15}], v[{KF+4*st}:{KF+4*st+3}], v[{Q0+4*st}:{Q0+4*st+3}], {c}")
        e(f"  ds_read_b128 v[{KF+4*st}:{KF+4*st+3}], v{KA+st} offset:{slot+8192}")
    for st in range(8):
        e(f"  s_waitcnt lgkmcnt({7-st})")
        c = "0" if st == 0 else f"v[{SB}:{SB+15}]"
        e(f"  v_mfma_f32_32x32x16_bf16 v[{SB}:{SB+15}], v[{KF+4*st}:{KF+4*st+3}], v[{Q0+4*st}:{Q0+4*st+3}], {c}")
    a = lambda i: f"v{SA+i}"
    b = lambda i: f"v{SB+i}"
    t_ = lambda i: f"v{T0+i}"
    e("  s_nop 3")
    e(f"  v_max3_f32 {t_(0)}, {a(0)}, {a(1)}, {a(2)}")
    e(f"  v_max3_f32 {t_(1)}, {a(3)}, {a(4)}, {a(5)}")
    e(f"  v_max3_f32 {t_(2)}, {a(6)}, {a(7)}, {a(8)}")
    e(f"  v_max3_f32 {t_(3)}, {a(9)}, {a(10)}, {a(11)}")
    e(f"  v_max3_f32 {t_(4)}, {a(12)}, {a(13)}, {a(14)}")
    e(f"  v_max3_f32 {t_(0)}, {t_(0)}, {t_(1)}, {a(15)}")
    e(f"  v_max3_f32 {t_(2)}, {t_(2)}, {t_(3)}, {t_(4)}")
    e("  s_nop 7")
    e(f"  v_max3_f32 {t_(1)}, {b(0)}, {b(1)}, {b(2)}")
    e(f"  v_max3_f32 {t_(3)}, {b(3)}, {b(4)}, {b(5)}")
    e(f"  v_max3_f32 {t_(4)}, {b(6)}, {b(7)}, {b(8)}")
    e(f"  v_max3_f32 {t_(5)}, {b(9)}, {b(10)}, {b(11)}")
    e(f"  v_max3_f32 {t_(6)}, {b(12)}, {b(13)}, {b(14)}")
    e(f"  v_max3_f32 {t_(0)}, {t_(0)}, {t_(2)}, {b(15)}")
    e(f"  v_max3_f32 {t_(1)}, {t_(1)}, {t_(3)}, {t_(4)}")
    e(f"  v_max3_f32 {t_(0)}, {t_(0)}, {t_(5)}, {t_(6)}")
    e(f"  v_max_f32 {t_(0)}, {t_(0)}, {t_(1)}")
    e(f"  v_mov_b32 {t_(1)}, {t_(0)}")
    e(f"  v_add_f32 {t_(2)}, 8.0, v{VM}") if False else e(f"  v_add_f32 {t_(2)}, s57, v{VM}")
    e("  s_nop 0")
    e(f"  v_permlane32_swap_b32 {t_(0)}, {t_(1)}")
    e(f"  v_max_f32 {t_(0)}, {t_(0)}, {t_(1)}")
    e(f"  v_mul_f32 {t_(0)}, s41, {t_(0)}")
    e(f"  v_cmp_gt_f32 vcc, {t_(0)}, {t_(2)}")
    e("  s_nop 1")
    e(f"  s_cbranch_vccz L_skip_{lab}")
    e(f"  v_max_f32 {t_(0)}, v{VM}, {t_(0)}")
    e(f"  v_sub_f32 {t_(1)}, v{VM}, {t_(0)}")
    e(f"  v_exp_f32 {t_(1)}, {t_(1)}")
    e(f"  v_mov_b32 v{VM}, {t_(0)}")
    for r in range(64):
        e(f"  v_mul_f32 v{O0+r}, {t_(1)}, v{O0+r}")
    e(f"  v_mul_f32 v{VL}, {t_(1)}, v{VL}")
    e(f"L_skip_{lab}:")
    for i in range(16):
        e(f"  v_fma_f32 {a(i)}, {a(i)}, s41, -v{VM}")
    for i in range(16):
        e(f"  v_exp_f32 {a(i)}, {a(i)}")
    for i in range(16):
        e(f"  v_fma_f32 {b(i)}, {b(i)}, s41, -v{VM}")
    for i in range(16):
        e(f"  v_exp_f32 {b(i)}, {b(i)}")
        if i % 2 == 1:
            j = i - 1
            e(f"  v_add_f32 {t_(j%4)}, {a(j)}, {a(j+1)}")
            e(f"  v_cvt_pk_bf16_f32 v{P0+j//2}, {a(j)}, {a(j+1)}")
            e(f"  v_add_f32 v{VL}, v{VL}, {t_(j%4)}")
    for i in range(0, 16, 2):
        e(f"  v_add_f32 {t_(i%4)}, {b(i)}, {b(i+1)}")
        e(f"  v_cvt_pk_bf16_f32 v{P0+8+i//2}, {b(i)}, {b(i+1)}")
        e(f"  v_add_f32 v{VL}, v{VL}, {t_(i%4)}")

def vreads(slot, s):
    st = s & 1
    for t in range(4):
        for ee in range(2):
            bb = VF + st*16 + t*4 + 2*ee
            e(f"  ds_read_b64_tr_b16 v[{bb}:{bb+1}], v{VA+t} offset:{slot+(16*s+8*ee)*256}")
def pvm(s):
    st = s & 1
    for t in range(4):
        bb = VF + st*16 + t*4
        e(f"  v_mfma_f32_32x32x16_bf16 v[{O0+16*t}:{O0+16*t+15}], v[{bb}:{bb+3}], v[{P0+4*s}:{P0+4*s+3}], v[{O0+16*t}:{O0+16*t+15}]")

def phase2(t):
    slot = (t & 3) * 16384
    vreads(slot, 0); vreads(slot, 1)
    e("  s_waitcnt lgkmcnt(8)"); pvm(0)
    vreads(slot, 2)
    e("  s_waitcnt lgkmcnt(8)"); pvm(1)
    vreads(slot, 3)
    e("  s_waitcnt lgkmcnt(8)"); pvm(2)
    e("  s_waitcnt lgkmcnt(0)"); pvm(3)

def kernel():
    e(f".globl {NAME}")
    e(".p2align 8")
    e(f".type {NAME},@function")
    e(f"{NAME}:")
    e("  s_cmp_ge_u32 s2, 256")
    e("  s_cbranch_scc1 L_done")
    e("  s_load_dwordx4 s[4:7], s[0:1], 0      ; q, k")
    e("  s_load_dwordx2 s[8:9], s[0:1], 16     ; v")
    e("  s_load_dwordx4 s[12:15], s[0:1], 24")
    e("  s_load_dwordx2 s[10:11], s[0:1], 40   ; ws")
    e("  v_lshrrev_b32 v1, 6, v0")
    e("  v_and_b32 v2, 63, v0                  ; lane")
    e("  v_readfirstlane_b32 s20, v1")
    e("  s_nop 3")
    e("  s_and_b32 s21, s20, 3                 ; q tile")
    e("  s_lshr_b32 s22, s20, 2                ; group")
    e("  s_lshr_b32 s58, s2, 2                 ; g")
    e("  s_waitcnt lgkmcnt(0)")
    e("  s_lshl_b32 s23, s58, 2")
    e("  s_add_u32 s60, s14, s23")
    e("  s_addc_u32 s61, s15, 0")
    e("  s_mov_b32 s62, 4")
    e("  s_mov_b32 s63, 0x00020000")
    e("  v_lshlrev_b32 v3, 2, v2")
    e("  s_cmp_lg_u32 s20, 0")
    e("  s_cbranch_scc1 L_noticket")
    e("  v_mov_b32 v253, 1")
    e("  buffer_atomic_add v253, v3, s[60:63], 0 offen sc0 sc1")
    e("L_noticket:")
    e("  s_lshl_b32 s23, s58, 2")
    e("  s_add_u32 s23, s23, s21")
    e("  s_lshl_b32 s23, s23, 13")
    e("  s_add_u32 s24, s4, s23")
    e("  s_addc_u32 s25, s5, 0")
    e("  s_mov_b32 s26, 8192")
    e("  s_mov_b32 s27, 0x00020000")
    e("  s_lshl_b32 s23, s2, 17")
    e("  s_add_u32 s28, s6, s23")
    e("  s_addc_u32 s29, s7, 0")
    e("  s_mov_b32 s30, 131072")
    e("  s_mov_b32 s31, 0x00020000")
    e("  s_add_u32 s32, s8, s23")
    e("  s_addc_u32 s33, s9, 0")
    e("  s_mov_b32 s34, 131072")
    e("  s_mov_b32 s35, 0x00020000")
    e("  v_and_b32 v3, 31, v2                  ; l&31")
    e("  v_lshrrev_b32 v4, 5, v2               ; h")
    e("  v_and_b32 v5, 15, v2                  ; i = l&15")
    e("  v_lshrrev_b32 v6, 4, v2               ; g = l>>4")
    e("  s_lshl_b32 s36, s20, 3")
    e("  v_add_u32 v8, s36, v6")
    e("  v_and_b32 v9, 15, v8")
    e("  v_xor_b32 v9, v9, v5")
    e(f"  v_lshlrev_b32 v{DK0}, 8, v8")
    e(f"  v_lshl_add_u32 v{DK0}, v9, 4, v{DK0}")
    e("  v_add_u32 v10, 4, v8")
    e("  v_and_b32 v9, 15, v10")
    e("  v_xor_b32 v9, v9, v5")
    e(f"  v_lshlrev_b32 v{DK1}, 8, v10")
    e(f"  v_lshl_add_u32 v{DK1}, v9, 4, v{DK1}")
    e(f"  v_subrev_u32 v{DK1}, 1024, v{DK1}")
    e("  v_lshlrev_b32 v9, 2, v6")
    e("  v_xor_b32 v9, v9, v5")
    e(f"  v_lshlrev_b32 v{DV}, 8, v8")
    e(f"  v_lshl_add_u32 v{DV}, v9, 4, v{DV}")
    e("  s_lshl_b32 s37, s20, 11")
    dma_k(0)
    e("  v_lshlrev_b32 v7, 8, v3")
    e("  v_lshl_add_u32 v7, v4, 4, v7")
    for st in range(8):
        e(f"  buffer_load_dwordx4 v[{Q0+4*st}:{Q0+4*st+3}], v7, s[24:27], 0 offen offset:{32*st}")
    dma_v(0); dma_k(1); dma_v(1); dma_k(2)
    e("  v_lshlrev_b32 v8, 8, v3")
    for st in range(8):
        e(f"  v_add_u32 v9, {2*st}, v4")
        e("  v_xor_b32 v9, v9, v5")
        e(f"  v_lshl_add_u32 v{KA+st}, v9, 4, v8")
    e("  v_lshrrev_b32 v9, 2, v5")
    e("  v_lshl_add_u32 v10, v4, 2, v9")
    e("  v_lshlrev_b32 v10, 8, v10")
    e("  v_add_u32 v10, 0x10000, v10")
    e("  v_and_b32 v11, 1, v6")
    e("  v_lshl_add_u32 v10, v11, 5, v10")
    e("  v_and_b32 v11, 3, v5")
    e("  v_lshl_add_u32 v10, v11, 3, v10")
    for t in range(4):
        e(f"  v_xor_b32 v11, {t}, v9")
        e(f"  v_lshl_add_u32 v{VA+t}, v11, 6, v10")
    for r in range(64):
        e(f"  v_mov_b32 v{O0+r}, 0")
    e(f"  v_mov_b32 v{VM}, 0xff800000")
    e(f"  v_mov_b32 v{VL}, 0")
    e("  s_mov_b32 s41, 0x3e0293ee")
    e("  s_mov_b32 s57, 0x41000000             ; T = 8")
    e("  s_cmp_ge_u32 s22, 1")
    e("  s_cbranch_scc1 L_groupB")
    for j in range(4):
        top(2*j)
        if j == 0:
            e("  s_cmp_lg_u32 s20, 0")
            e("  s_cbranch_scc1 L_notick2")
            e("  v_readfirstlane_b32 s59, v253")
            e(f"  v_mov_b32 v254, {TICKET_LDS}")
            e("  s_nop 1")
            e("  v_mov_b32 v253, s59")
            e("  ds_write_b32 v254, v253")
            e("L_notick2:")
        phase1(2*j, f"a{j}")
        top(2*j+1); phase2(2*j)
    top(8)
    e("  s_branch L_epi")
    e("L_groupB:")
    top(0)
    for j in range(4):
        top(2*j+1); phase1(2*j+1, f"b{j}")
        top(2*j+2); phase2(2*j+1)
    e("L_epi:")
    e("  s_nop 15")
    e("  s_barrier")
    t_ = lambda i: f"v{T0+i}"
    e(f"  v_mov_b32 {t_(1)}, v{VL}")
    e(f"  v_mov_b32 v254, {TICKET_LDS}")
    e("  ds_read_b32 v253, v254")
    e(f"  v_permlane32_swap_b32 v{VL}, {t_(1)}")
    e(f"  v_add_f32 v{VL}, v{VL}, {t_(1)}")
    e("  s_mul_i32 s43, s20, 9216")
    e("  s_xor_b32 s44, s20, 4")
    e("  s_mul_i32 s44, s44, 9216")
    e("  v_lshlrev_b32 v8, 4, v2")
    e("  v_add_u32 v9, s44, v8")
    e("  v_add_u32 v8, s43, v8")
    e("  v_lshlrev_b32 v10, 3, v2")
    e("  v_add_u32 v11, s44, v10")
    e("  v_add_u32 v10, s43, v10")
    e(f"  v_mov_b32 v12, v{VM}")
    e(f"  v_mov_b32 v13, v{VL}")
    e("  s_waitcnt lgkmcnt(0)")
    e("  v_readfirstlane_b32 s59, v253          ; ticket")
    e("  ds_write_b64 v10, v[12:13] offset:8192")
    e("  s_and_b32 s59, s59, 0xffff")
    e("  s_cmp_ge_u32 s22, 1")
    e("  s_cbranch_scc1 L_ep_hi")
    def ep(send, keep, tbase, lab):
        for qd in range(8):
            e(f"  ds_write_b128 v8, v[{send+4*qd}:{send+4*qd+3}] offset:{1024*qd}")
        e("  s_waitcnt lgkmcnt(0)")
        e("  s_barrier")
        e("  ds_read_b64 v[14:15], v11 offset:8192")
        for qd in range(8):
            e(f"  ds_read_b128 v[{send+4*qd}:{send+4*qd+3}], v9 offset:{1024*qd}")
        e("  s_waitcnt lgkmcnt(8)")
        e(f"  v_max_f32 v16, v{VM}, v14")
        e(f"  v_sub_f32 v17, v{VM}, v16")
        e("  v_sub_f32 v18, v14, v16")
        e("  v_exp_f32 v17, v17")
        e("  v_exp_f32 v18, v18")
        e("  s_nop 0")
        e(f"  v_mul_f32 v19, v17, v{VL}")
        e("  v_fma_f32 v19, v18, v15, v19          ; L")
        e("  s_waitcnt lgkmcnt(0)")
        for r in range(32):
            e(f"  v_mul_f32 v{keep+r}, v17, v{keep+r}")
            e(f"  v_fma_f32 v{keep+r}, v18, v{send+r}, v{keep+r}")
        e("  s_cmp_eq_u32 s59, 3")
        e(f"  s_cbranch_scc1 L_comb_{lab}")
        e("  s_lshl_b32 s45, s2, 2")
        e("  s_add_u32 s45, s45, s21")
        e("  s_lshl_b32 s46, s45, 14")
        e(f"  s_add_u32 s46, s46, {tbase*4096}")
        e("  s_add_u32 s48, s10, s46")
        e("  s_addc_u32 s49, s11, 0")
        e("  s_mov_b32 s50, 8192")
        e("  s_mov_b32 s51, 0x00020000")
        e("  v_lshlrev_b32 v8, 4, v2")
        e("  s_mov_b32 s47, 4096")
        for qd in range(8):
            so = "0" if qd < 4 else "s47"
            e(f"  buffer_store_dwordx4 v[{keep+4*qd}:{keep+4*qd+3}], v8, s[48:51], {so} offen offset:{1024*(qd&3)} {PPOL}")
        if tbase == 0:
            e("  s_lshl_b32 s46, s45, 8")
            e(f"  s_add_u32 s46, s46, {ML_OFF}")
            e("  s_add_u32 s52, s10, s46")
            e("  s_addc_u32 s53, s11, 0")
            e("  s_mov_b32 s54, 256")
            e("  s_mov_b32 s55, 0x00020000")
            e("  v_lshlrev_b32 v8, 3, v2")
            e("  v_mov_b32 v17, v19")
            e(f"  buffer_store_dwordx2 v[16:17], v8, s[52:55], 0 offen {PPOL}")
        e("  s_waitcnt vmcnt(0)")
        e("  s_barrier")
        e("  s_cmp_lg_u32 s20, 0")
        e(f"  s_cbranch_scc1 L_done")
        e("  v_lshlrev_b32 v3, 2, v2")
        e("  v_mov_b32 v4, 0x10000")
        e("  buffer_atomic_add v4, v3, s[60:63], 0 offen sc1")
        e("  s_endpgm")
        e(f"L_comb_{lab}:")
        e("  s_barrier")
        e("  v_lshlrev_b32 v3, 2, v2")
        e(f"L_poll_{lab}:")
        e("  buffer_load_dword v4, v3, s[60:63], 0 offen sc1")
        e("  s_waitcnt vmcnt(0)")
        e("  v_readfirstlane_b32 s46, v4")
        e("  s_nop 3")
        e("  s_lshr_b32 s46, s46, 16")
        e("  s_cmp_ge_u32 s46, 3")
        e(f"  s_cbranch_scc1 L_go_{lab}")
        e("  s_sleep 2")
        e(f"  s_branch L_poll_{lab}")
        e(f"L_go_{lab}:")
        e("  v_lshlrev_b32 v8, 4, v2")
        e("  v_and_b32 v20, 31, v2")
        e("  v_lshlrev_b32 v20, 3, v20")
        e("  s_lshl_b32 s46, s58, 18")
        e("  s_lshl_b32 s45, s21, 14")
        e("  s_add_u32 s46, s46, s45")
        e(f"  s_add_u32 s46, s46, {tbase*4096}")
        e("  s_add_u32 s48, s10, s46")
        e("  s_addc_u32 s49, s11, 0")
        e("  s_mov_b32 s50, 262144")
        e("  s_mov_b32 s51, 0x00020000")
        e("  s_lshl_b32 s46, s58, 12")
        e("  s_lshl_b32 s45, s21, 8")
        e("  s_add_u32 s46, s46, s45")
        e(f"  s_add_u32 s46, s46, {ML_OFF}")
        e("  s_add_u32 s52, s10, s46")
        e("  s_addc_u32 s53, s11, 0")
        e("  s_mov_b32 s54, 4096")
        e("  s_mov_b32 s55, 0x00020000")
        for k in range(1, 4):
            e(f"  s_add_u32 s45, s2, {k}")
            e("  s_and_b32 s45, s45, 3")
            e("  s_lshl_b32 s46, s45, 10")
            e(f"  buffer_load_dwordx2 v[{20+2*k}:{21+2*k}], v20, s[52:55], s46 offen {LPOL}")
        for k in range(1, 4):
            e(f"  s_add_u32 s45, s2, {k}")
            e("  s_and_b32 s45, s45, 3")
            e("  s_lshl_b32 s46, s45, 16")
            e("  s_add_u32 s47, s46, 4096")
            for qd in range(8):
                so = "s46" if qd < 4 else "s47"
                bb = 32 + 32*(k-1) + 4*qd
                e(f"  buffer_load_dwordx4 v[{bb}:{bb+3}], v8, s[48:51], {so} offen offset:{1024*(qd&3)} {LPOL}")
        e("  s_waitcnt vmcnt(24)")
        e("  v_max_f32 v28, v16, v22")
        e("  v_max3_f32 v28, v28, v24, v26")
        e("  v_sub_f32 v16, v16, v28")
        e("  v_sub_f32 v22, v22, v28")
        e("  v_sub_f32 v24, v24, v28")
        e("  v_sub_f32 v26, v26, v28")
        e("  v_exp_f32 v16, v16")
        e("  v_exp_f32 v22, v22")
        e("  v_exp_f32 v24, v24")
        e("  v_exp_f32 v26, v26")
        e("  s_nop 0")
        e("  v_mul_f32 v29, v16, v19")
        e("  v_fma_f32 v29, v22, v23, v29")
        e("  v_fma_f32 v29, v24, v25, v29")
        e("  v_fma_f32 v29, v26, v27, v29")
        e("  v_rcp_f32 v29, v29")
        e("  s_nop 0")
        e("  v_mul_f32 v16, v16, v29")
        e("  v_mul_f32 v22, v22, v29")
        e("  v_mul_f32 v24, v24, v29")
        e("  v_mul_f32 v26, v26, v29")
        for r in range(32):
            e(f"  v_mul_f32 v{keep+r}, v16, v{keep+r}")
        for k, w in ((1, 22), (2, 24), (3, 26)):
            e(f"  s_waitcnt vmcnt({8*(3-k)})")
            for r in range(32):
                e(f"  v_fma_f32 v{keep+r}, v{w}, v{32+32*(k-1)+r}, v{keep+r}")
        for j in range(16):
            e(f"  v_cvt_pk_bf16_f32 v{32+j}, v{keep+2*j}, v{keep+2*j+1}")
        e("  s_nop 1")
        for tt in range(2):
            b4 = 32 + 8*tt
            e(f"  v_permlane32_swap_b32 v{b4}, v{b4+2}")
            e(f"  v_permlane32_swap_b32 v{b4+1}, v{b4+3}")
            e(f"  v_permlane32_swap_b32 v{b4+4}, v{b4+6}")
            e(f"  v_permlane32_swap_b32 v{b4+5}, v{b4+7}")
        e("  s_lshl_b32 s46, s58, 2")
        e("  s_add_u32 s46, s46, s21")
        e("  s_lshl_b32 s46, s46, 13")
        e("  s_add_u32 s28, s12, s46")
        e("  s_addc_u32 s29, s13, 0")
        e("  s_mov_b32 s30, 8192")
        e("  s_mov_b32 s31, 0x00020000")
        e("  v_lshrrev_b32 v6, 5, v2")
        e("  v_and_b32 v7, 31, v2")
        e("  v_lshlrev_b32 v7, 8, v7")
        e("  v_lshl_add_u32 v7, v6, 4, v7")
        for tt in range(2):
            b4 = 32 + 8*tt
            e(f"  buffer_store_dwordx4 v[{b4}:{b4+3}], v7, s[28:31], 0 offen offset:{(tbase+tt)*64}")
            e(f"  buffer_store_dwordx4 v[{b4+4}:{b4+7}], v7, s[28:31], 0 offen offset:{(tbase+tt)*64+32}")
        e("  s_endpgm")
    ep(O0+32, O0, 0, "lo")
    e("L_ep_hi:")
    ep(O0, O0+32, 2, "hi")
    e("L_done:")
    e("  s_endpgm")

e(HEADER.rstrip())
e("; @launch grid=(256,1,1) block=(512,1,1) lds=131136")
e('.amdgcn_target "amdgcn-amd-amdhsa--gfx950"')
e(".text")
kernel()
e('.section .rodata,"a"')
e(".p2align 6")
e(f".amdhsa_kernel {NAME}")
e("  .amdhsa_next_free_vgpr 256")
e("  .amdhsa_next_free_sgpr 72")
e("  .amdhsa_accum_offset 256")
e("  .amdhsa_group_segment_fixed_size 0")
e("  .amdhsa_kernarg_size 48")
e("  .amdhsa_user_sgpr_count 2")
e("  .amdhsa_user_sgpr_kernarg_segment_ptr 1")
e("  .amdhsa_system_sgpr_workgroup_id_x 1")
e(".end_amdhsa_kernel")
open(sys.argv[1] if len(sys.argv) > 1 else "standalone__gqa_softmax__sampling.s", "w").write("\n".join(out) + "\n")
```

```python
import sys, os
POL = os.environ.get("POL", "nt")
PPOL = os.environ.get("PPOL", "sc1")
LPOL = os.environ.get("LPOL", "sc1")
STAMP = int(os.environ.get("STAMP", "0"))
PRIO = int(os.environ.get("PRIO", "1"))
FORCE_ABANDON = int(os.environ.get("FORCE_ABANDON", "0"))
nstamp = [0]
def stamp():
    if STAMP:
        i = nstamp[0]; nstamp[0] += 1
        e(f"  s_memtime s[{66+2*i}:{67+2*i}]")

HEADER = """; Kernarg layout for this problem (48 bytes, ptrs only, base s[0:1]):
"""
out = []
def e(s=""):
    out.append(s)

Q0 = 16; KF = 48; VF = 80; SA = 112; SB = 128; P0 = 144; O0 = 160
KA = 224; VA = 232; DK0, DK1, DV = 236, 237, 238
VM, VL = 239, 240
T0 = 241
ML_OFF = 16 * 1024 * 1024
XLDS = 131072
NAME = "standalone__gqa_softmax__sampling_kernel"

def dma_k(t):
    e(f"  s_add_u32 s38, s37, {(t&3)*16384}")
    e("  s_mov_b32 m0, s38")
    e(f"  s_mov_b32 s39, {t*16384}")
    e(f"  buffer_load_dwordx4 v{DK0}, s[28:31], s39 offen {POL} lds")
    e(f"  buffer_load_dwordx4 v{DK1}, s[28:31], s39 offen offset:1024 {POL} lds")
def dma_v(t):
    e(f"  s_add_u32 s38, s37, {65536+(t&3)*16384}")
    e("  s_mov_b32 m0, s38")
    e(f"  s_mov_b32 s39, {t*16384}")
    e(f"  buffer_load_dwordx4 v{DV}, s[32:35], s39 offen {POL} lds")
    e(f"  buffer_load_dwordx4 v{DV}, s[32:35], s39 offen offset:1024 {POL} lds")

WAITS = {0: 6, 6: 6, 7: 4, 8: 2, 9: 0}
def top(i):
    n = WAITS.get(i, 8)
    e(f"  ; ---- interval {i} ----")
    e(f"  s_waitcnt vmcnt({n})")
    e("  s_barrier")
    stamp()
    if i + 3 <= 7: dma_k(i + 3)
    if i + 1 <= 7: dma_v(i + 1)

def vread1(slot, s, idx):
    t, ee = idx >> 1, idx & 1
    bb = VF + (s & 1)*16 + t*4 + 2*ee
    e(f"  ds_read_b64_tr_b16 v[{bb}:{bb+1}], v{VA+t} offset:{slot+(16*s+8*ee)*256}")
def vreads(slot, s):
    for idx in range(8): vread1(slot, s, idx)
def pvm(s):
    for t in range(4):
        bb = VF + (s & 1)*16 + t*4
        e(f"  v_mfma_f32_32x32x16_bf16 v[{O0+16*t}:{O0+16*t+15}], v[{bb}:{bb+3}], v[{P0+4*s}:{P0+4*s+3}], v[{O0+16*t}:{O0+16*t+15}]")

def mfma_phase(tk, tv):
    if PRIO: e("  s_setprio 1")
    vs = None if tv is None else (tv & 3) * 16384
    if tk is not None:
        slot = (tk & 3) * 16384
        for st in range(8):
            e(f"  ds_read_b128 v[{KF+4*st}:{KF+4*st+3}], v{KA+st} offset:{slot}")
        for st in range(8):
            e("  s_waitcnt lgkmcnt(7)")
            c = "0" if st == 0 else f"v[{SA}:{SA+15}]"
            e(f"  v_mfma_f32_32x32x16_bf16 v[{SA}:{SA+15}], v[{KF+4*st}:{KF+4*st+3}], v[{Q0+4*st}:{Q0+4*st+3}], {c}")
            e(f"  ds_read_b128 v[{KF+4*st}:{KF+4*st+3}], v{KA+st} offset:{slot+8192}")
        for st in range(8):
            if tv is not None:
                e(f"  s_waitcnt lgkmcnt({min(7+st, 13)})" if st < 7 else "  s_waitcnt lgkmcnt(13)")
            else:
                e(f"  s_waitcnt lgkmcnt({7-st})")
            c = "0" if st == 0 else f"v[{SB}:{SB+15}]"
            e(f"  v_mfma_f32_32x32x16_bf16 v[{SB}:{SB+15}], v[{KF+4*st}:{KF+4*st+3}], v[{Q0+4*st}:{Q0+4*st+3}], {c}")
            if tv is not None:
                vread1(vs, st >> 2, 2*(st & 3)); vread1(vs, st >> 2, 2*(st & 3) + 1)
    elif tv is not None:
        vreads(vs, 0); vreads(vs, 1)
    if tv is not None:
        e("  s_waitcnt lgkmcnt(8)"); pvm(0)
        vreads(vs, 2)
        e("  s_waitcnt lgkmcnt(8)"); pvm(1)
        vreads(vs, 3)
        e("  s_waitcnt lgkmcnt(8)"); pvm(2)
        e("  s_waitcnt lgkmcnt(0)"); pvm(3)
    if PRIO: e("  s_setprio 0")

def valu_phase(lab):
    a = lambda i: f"v{SA+i}"
    b = lambda i: f"v{SB+i}"
    t_ = lambda i: f"v{T0+i}"
    e(f"  v_max3_f32 {t_(0)}, {a(0)}, {a(1)}, {a(2)}")
    e(f"  v_max3_f32 {t_(1)}, {a(3)}, {a(4)}, {a(5)}")
    e(f"  v_max3_f32 {t_(2)}, {a(6)}, {a(7)}, {a(8)}")
    e(f"  v_max3_f32 {t_(3)}, {a(9)}, {a(10)}, {a(11)}")
    e(f"  v_max3_f32 {t_(4)}, {a(12)}, {a(13)}, {a(14)}")
    e(f"  v_max3_f32 {t_(0)}, {t_(0)}, {t_(1)}, {a(15)}")
    e(f"  v_max3_f32 {t_(2)}, {t_(2)}, {t_(3)}, {t_(4)}")
    e(f"  v_max3_f32 {t_(1)}, {b(0)}, {b(1)}, {b(2)}")
    e(f"  v_max3_f32 {t_(3)}, {b(3)}, {b(4)}, {b(5)}")
    e(f"  v_max3_f32 {t_(4)}, {b(6)}, {b(7)}, {b(8)}")
    e(f"  v_max3_f32 {t_(5)}, {b(9)}, {b(10)}, {b(11)}")
    e(f"  v_max3_f32 {t_(6)}, {b(12)}, {b(13)}, {b(14)}")
    e(f"  v_max3_f32 {t_(0)}, {t_(0)}, {t_(2)}, {b(15)}")
    e(f"  v_max3_f32 {t_(1)}, {t_(1)}, {t_(3)}, {t_(4)}")
    e(f"  v_max3_f32 {t_(0)}, {t_(0)}, {t_(5)}, {t_(6)}")
    e(f"  v_max_f32 {t_(0)}, {t_(0)}, {t_(1)}")
    e(f"  v_mov_b32 {t_(1)}, {t_(0)}")
    e(f"  v_add_f32 {t_(2)}, s57, v{VM}")
    e("  s_nop 0")
    e(f"  v_permlane32_swap_b32 {t_(0)}, {t_(1)}")
    e(f"  v_max_f32 {t_(0)}, {t_(0)}, {t_(1)}")
    e(f"  v_mul_f32 {t_(0)}, s41, {t_(0)}")
    e(f"  v_cmp_gt_f32 vcc, {t_(0)}, {t_(2)}")
    e("  s_nop 1")
    e(f"  s_cbranch_vccz L_skip_{lab}")
    e(f"  v_max_f32 {t_(0)}, v{VM}, {t_(0)}")
    e(f"  v_sub_f32 {t_(1)}, v{VM}, {t_(0)}")
    e(f"  v_exp_f32 {t_(1)}, {t_(1)}")
    e(f"  v_mov_b32 v{VM}, {t_(0)}")
    for r in range(64):
        e(f"  v_mul_f32 v{O0+r}, {t_(1)}, v{O0+r}")
    e(f"  v_mul_f32 v{VL}, {t_(1)}, v{VL}")
    e(f"L_skip_{lab}:")
    for i in range(16):
        e(f"  v_fma_f32 {a(i)}, {a(i)}, s41, -v{VM}")
    for i in range(16):
        e(f"  v_exp_f32 {a(i)}, {a(i)}")
    for i in range(16):
        e(f"  v_fma_f32 {b(i)}, {b(i)}, s41, -v{VM}")
    for i in range(16):
        e(f"  v_exp_f32 {b(i)}, {b(i)}")
        if i % 2 == 1:
            j = i - 1
            e(f"  v_add_f32 {t_(j%4)}, {a(j)}, {a(j+1)}")
            e(f"  v_cvt_pk_bf16_f32 v{P0+j//2}, {a(j)}, {a(j+1)}")
            e(f"  v_add_f32 v{VL}, v{VL}, {t_(j%4)}")
    for i in range(0, 16, 2):
        e(f"  v_add_f32 {t_(i%4)}, {b(i)}, {b(i+1)}")
        e(f"  v_cvt_pk_bf16_f32 v{P0+8+i//2}, {b(i)}, {b(i+1)}")
        e(f"  v_add_f32 v{VL}, v{VL}, {t_(i%4)}")

def kernel():
    e(f".globl {NAME}")
    e(".p2align 8")
    e(f".type {NAME},@function")
    e(f"{NAME}:")
    e("  s_cmp_ge_u32 s2, 256")
    e("  s_cbranch_scc1 L_done")
    e("  s_load_dwordx4 s[4:7], s[0:1], 0      ; q, k")
    e("  s_load_dwordx2 s[8:9], s[0:1], 16     ; v")
    e("  s_load_dwordx4 s[12:15], s[0:1], 24")
    e("  s_load_dwordx2 s[10:11], s[0:1], 40   ; ws")
    e("  v_lshrrev_b32 v1, 6, v0")
    e("  v_and_b32 v2, 63, v0                  ; lane")
    e("  v_readfirstlane_b32 s20, v1")
    e("  s_nop 3")
    e("  s_and_b32 s21, s20, 3                 ; q tile")
    e("  s_lshr_b32 s22, s20, 2                ; group")
    e("  s_lshr_b32 s58, s2, 2                 ; g")
    e("  s_and_b32 s59, s2, 3                  ; split")
    e("  v_and_b32 v3, 31, v2                  ; l&31")
    e("  v_lshrrev_b32 v4, 5, v2               ; h")
    e("  v_and_b32 v5, 15, v2                  ; i = l&15")
    e("  v_lshrrev_b32 v6, 4, v2               ; g = l>>4")
    e("  s_lshl_b32 s36, s20, 3")
    e("  v_add_u32 v8, s36, v6")
    e("  v_and_b32 v9, 15, v8")
    e("  v_xor_b32 v9, v9, v5")
    e(f"  v_lshlrev_b32 v{DK0}, 8, v8")
    e(f"  v_lshl_add_u32 v{DK0}, v9, 4, v{DK0}")
    e("  v_add_u32 v10, 4, v8")
    e("  v_and_b32 v9, 15, v10")
    e("  v_xor_b32 v9, v9, v5")
    e(f"  v_lshlrev_b32 v{DK1}, 8, v10")
    e(f"  v_lshl_add_u32 v{DK1}, v9, 4, v{DK1}")
    e(f"  v_subrev_u32 v{DK1}, 1024, v{DK1}")
    e("  v_lshlrev_b32 v9, 2, v6")
    e("  v_xor_b32 v9, v9, v5")
    e(f"  v_lshlrev_b32 v{DV}, 8, v8")
    e(f"  v_lshl_add_u32 v{DV}, v9, 4, v{DV}")
    e("  s_lshl_b32 s37, s20, 11")
    e("  s_lshl_b32 s23, s2, 17")
    e("  s_waitcnt lgkmcnt(0)")
    e("  s_lshl_b32 s24, s58, 2")
    e("  s_add_u32 s60, s14, s24")
    e("  s_addc_u32 s61, s15, 0")
    e("  s_mov_b32 s62, 4")
    e("  s_mov_b32 s63, 0x00020000")
    e("  v_lshlrev_b32 v15, 2, v2")
    e("  s_cmp_lg_u32 s20, 0")
    e("  s_cbranch_scc1 L_noarrive")
    e("  v_mov_b32 v14, 1")
    e("  buffer_atomic_add v14, v15, s[60:63], 0 offen sc1")
    e("L_noarrive:")
    e("  s_add_u32 s28, s6, s23")
    e("  s_addc_u32 s29, s7, 0")
    e("  s_mov_b32 s30, 131072")
    e("  s_mov_b32 s31, 0x00020000")
    dma_k(0)
    e("  s_add_u32 s32, s8, s23")
    e("  s_addc_u32 s33, s9, 0")
    e("  s_mov_b32 s34, 131072")
    e("  s_mov_b32 s35, 0x00020000")
    e("  s_lshl_b32 s23, s58, 2")
    e("  s_add_u32 s23, s23, s21")
    e("  s_lshl_b32 s23, s23, 13")
    e("  s_add_u32 s24, s4, s23")
    e("  s_addc_u32 s25, s5, 0")
    e("  s_mov_b32 s26, 8192")
    e("  s_mov_b32 s27, 0x00020000")
    e("  v_lshlrev_b32 v7, 8, v3")
    e("  v_lshl_add_u32 v7, v4, 4, v7")
    for st in range(8):
        e(f"  buffer_load_dwordx4 v[{Q0+4*st}:{Q0+4*st+3}], v7, s[24:27], 0 offen offset:{32*st}")
    dma_k(1); dma_v(0); dma_k(2)
    e("  v_lshlrev_b32 v8, 8, v3")
    for st in range(8):
        e(f"  v_add_u32 v9, {2*st}, v4")
        e("  v_xor_b32 v9, v9, v5")
        e(f"  v_lshl_add_u32 v{KA+st}, v9, 4, v8")
    e("  v_lshrrev_b32 v9, 2, v5")
    e("  v_lshl_add_u32 v10, v4, 2, v9")
    e("  v_lshlrev_b32 v10, 8, v10")
    e("  v_add_u32 v10, 0x10000, v10")
    e("  v_and_b32 v11, 1, v6")
    e("  v_lshl_add_u32 v10, v11, 5, v10")
    e("  v_and_b32 v11, 3, v5")
    e("  v_lshl_add_u32 v10, v11, 3, v10")
    for t in range(4):
        e(f"  v_xor_b32 v11, {t}, v9")
        e(f"  v_lshl_add_u32 v{VA+t}, v11, 6, v10")
    for r in range(64):
        e(f"  v_mov_b32 v{O0+r}, 0")
    e(f"  v_mov_b32 v{VM}, 0xff800000")
    e(f"  v_mov_b32 v{VL}, 0")
    e("  s_mov_b32 s41, 0x3e0293ee")
    e("  s_mov_b32 s57, 0x41000000             ; T = 8")
    stamp()
    e("  s_cmp_ge_u32 s22, 1")
    e("  s_cbranch_scc1 L_groupB")
    top(0)
    mfma_phase(0, None)
    for j in range(4):
        top(2*j+1); valu_phase(f"a{j}")
        top(2*j+2); mfma_phase(2*j+2 if j < 3 else None, 2*j)
    top(9)
    e("  s_branch L_epi")
    e("L_groupB:")
    nstamp[0] = 1
    top(0)
    top(1); mfma_phase(1, None)
    for j in range(4):
        top(2*j+2); valu_phase(f"b{j}")
        top(2*j+3); mfma_phase(2*j+3 if j < 3 else None, 2*j+1)
    e("L_epi:")
    stamp()
    t_ = lambda i: f"v{T0+i}"
    e(f"  v_mov_b32 {t_(1)}, v{VL}")
    e("  s_nop 7")
    e("  s_nop 7")
    e(f"  v_permlane32_swap_b32 v{VL}, {t_(1)}")
    e(f"  v_add_f32 v{VL}, v{VL}, {t_(1)}")
    e("  s_barrier")
    e("  s_lshl_b32 s43, s20, 14")
    e("  v_lshlrev_b32 v8, 4, v2")
    e("  v_add_u32 v9, s43, v8")
    for qd in range(16):
        e(f"  ds_write_b128 v9, v[{O0+4*qd}:{O0+4*qd+3}] offset:{1024*qd}")
    e("  s_lshl_b32 s43, s20, 9")
    e("  v_lshlrev_b32 v10, 3, v2")
    e("  v_add_u32 v11, s43, v10")
    e(f"  v_add_u32 v11, {XLDS+64}, v11")
    e(f"  v_mov_b32 v12, v{VM}")
    e(f"  v_mov_b32 v13, v{VL}")
    e("  ds_write_b64 v11, v[12:13]")
    e("  s_waitcnt lgkmcnt(0)")
    e("  s_barrier")
    e("  s_lshl_b32 s43, s20, 11")
    e("  v_add_u32 v9, s43, v8                 ; + lane*16")
    e(f"  v_add_u32 v10, {XLDS+64}, v10")
    e("  s_lshl_b32 s46, s2, 16")
    e("  s_add_u32 s48, s10, s46")
    e("  s_addc_u32 s49, s11, 0")
    e("  s_mov_b32 s50, 65536")
    e("  s_mov_b32 s51, 0x00020000")
    def rd(j):
        rb = 16 + 16*j; mb = 80 + 4*j
        e(f"  ds_read_b64 v[{mb}:{mb+1}], v10 offset:{j*512}")
        e(f"  ds_read_b64 v[{mb+2}:{mb+3}], v10 offset:{(j+4)*512}")
        e(f"  v_add_u32 v14, {j*16384}, v9")
        e(f"  ds_read_b128 v[{rb}:{rb+3}], v14")
        e(f"  ds_read_b128 v[{rb+4}:{rb+7}], v14 offset:1024")
        e(f"  v_add_u32 v14, {(j+4)*16384}, v9")
        e(f"  ds_read_b128 v[{rb+8}:{rb+11}], v14")
        e(f"  ds_read_b128 v[{rb+12}:{rb+15}], v14 offset:1024")
    rd(0); rd(1)
    for j in range(4):
        rb = 16 + 16*j; mb = 80 + 4*j
        e(f"  s_waitcnt lgkmcnt({6 if j < 3 else 0})")
        if j + 2 < 4: rd(j + 2)
        e(f"  v_max_f32 v100, v{mb}, v{mb+2}")
        e(f"  v_sub_f32 v101, v{mb}, v100")
        e(f"  v_sub_f32 v102, v{mb+2}, v100")
        e("  v_exp_f32 v101, v101")
        e("  v_exp_f32 v102, v102")
        e("  s_nop 0")
        e(f"  v_mul_f32 v103, v101, v{mb+1}")
        e(f"  v_fma_f32 v{mb+1}, v102, v{mb+3}, v103     ; L")
        e(f"  v_mov_b32 v{mb}, v100                       ; M")
        for r in range(8):
            e(f"  v_mul_f32 v{rb+r}, v101, v{rb+r}")
            e(f"  v_fma_f32 v{rb+r}, v102, v{rb+8+r}, v{rb+r}")
        e(f"  s_add_u32 s46, s43, {j*16384}")
        e(f"  buffer_store_dwordx4 v[{rb}:{rb+3}], v8, s[48:51], s46 offen {PPOL}")
        e(f"  buffer_store_dwordx4 v[{rb+4}:{rb+7}], v8, s[48:51], s46 offen offset:1024 {PPOL}")
    e("  s_cmp_lg_u32 s20, 0")
    e("  s_cbranch_scc1 L_noml")
    e("  s_lshl_b32 s46, s2, 10")
    e(f"  s_add_u32 s46, s46, {ML_OFF}")
    e("  s_add_u32 s52, s10, s46")
    e("  s_addc_u32 s53, s11, 0")
    e("  v_lshlrev_b32 v14, 3, v2")
    e("  s_mov_b32 s55, 0x00020000")
    for j in range(4):
        mb = 80 + 4*j
        e(f"  s_mov_b32 s54, {(j+1)*256}") if False else None
    e("  s_mov_b32 s54, 1024")
    e("  v_cmp_gt_u32 vcc, 32, v2")
    e("  s_and_saveexec_b64 s[44:45], vcc")
    for j in range(4):
        mb = 80 + 4*j
        e(f"  buffer_store_dwordx2 v[{mb}:{mb+1}], v14, s[52:55], 0 offen offset:{j*256} {PPOL}")
    e("  s_mov_b64 exec, s[44:45]")
    e("  buffer_load_dword v104, v15, s[60:63], 0 offen sc1")
    e("L_noml:")
    e("  s_waitcnt vmcnt(0)")
    e("  s_barrier")
    stamp()
    e("  s_cmp_lg_u32 s20, 0")
    e("  s_cbranch_scc1 L_w_notzero")
    e("  v_readfirstlane_b32 s46, v104")
    e("  s_nop 3")
    e("  s_and_b32 s46, s46, 0xff")
    e("  s_lshl_b32 s47, 0x10000, s59")
    if FORCE_ABANDON:
        e("  s_cmp_eq_u32 s46, 77")
    else:
        e("  s_cmp_eq_u32 s46, 4")
    e("  s_cselect_b32 s47, 0, s47")
    e("  s_add_u32 s47, s47, 0x100")
    e("  v_mov_b32 v104, s47")
    e("  buffer_atomic_add v104, v15, s[60:63], 0 offen sc0 sc1")
    e("  s_waitcnt vmcnt(0)")
    e("  v_readfirstlane_b32 s46, v104         ; old")
    e("  s_nop 3")
    e("  s_add_u32 s46, s46, s47")
    e(f"  v_mov_b32 v105, {XLDS}")
    e("  v_mov_b32 v106, s46")
    e("  v_mov_b32 v107, s47")
    e("  ds_write_b64 v105, v[106:107]")
    e("  s_waitcnt lgkmcnt(0)")
    e("L_w_notzero:")
    e("  s_barrier")
    e(f"  v_mov_b32 v105, {XLDS}")
    e("  ds_read_b64 v[106:107], v105")
    e("  s_waitcnt lgkmcnt(0)")
    e("  v_readfirstlane_b32 s46, v106")
    e("  v_readfirstlane_b32 s47, v107")
    e("  s_nop 3")
    e("  s_bfe_u32 s44, s46, 0x80008")
    e("  s_lshr_b32 s45, s46, 16")
    e("  s_lshl_b32 s43, 1, s59")
    e("  s_cmp_eq_u32 s47, 0x100               ; coop?")
    e("  s_cselect_b32 s42, s43, 0")
    e("  s_cmp_eq_u32 s44, 4                   ; last?")
    e("  s_cbranch_scc0 L_notlast")
    e("  s_or_b32 s42, s42, s45")
    e("  s_branch L_fin")
    e("L_notlast:")
    e("  s_cmp_eq_u32 s42, 0")
    e("  s_cbranch_scc1 L_done")
    e("L_poll:")
    e("  buffer_load_dword v104, v15, s[60:63], 0 offen sc1")
    e("  s_waitcnt vmcnt(0)")
    e("  v_readfirstlane_b32 s46, v104")
    e("  s_nop 3")
    e("  s_bfe_u32 s44, s46, 0x80008")
    e("  s_cmp_ge_u32 s44, 4")
    e("  s_cbranch_scc1 L_fin")
    e("  s_sleep 1")
    e("  s_branch L_poll")
    e("L_fin:")
    stamp()
    e("  s_lshl_b32 s46, s58, 18")
    e("  s_add_u32 s48, s10, s46")
    e("  s_addc_u32 s49, s11, 0")
    e("  s_mov_b32 s50, 262144")
    e("  s_lshl_b32 s46, s58, 12")
    e(f"  s_add_u32 s46, s46, {ML_OFF}")
    e("  s_add_u32 s52, s10, s46")
    e("  s_addc_u32 s53, s11, 0")
    e("  s_mov_b32 s54, 4096")
    e("  s_mov_b32 s55, 0x00020000")
    e("  v_and_b32 v20, 31, v2")
    e("  v_lshlrev_b32 v20, 3, v20")
    e("  s_lshl_b32 s40, s20, 11               ; w*2048")
    e("  v_lshrrev_b32 v6, 5, v2")
    e("  v_and_b32 v7, 31, v2")
    e("  v_lshlrev_b32 v7, 8, v7")
    e("  v_lshl_add_u32 v7, v6, 4, v7          ; q*256 + h*16")
    e("  s_lshl_b32 s46, s20, 5")
    e("  v_add_u32 v7, s46, v7")
    e("L_finloop:")
    e("  s_ff1_i32_b32 s44, s42                ; j")
    e("  s_lshl_b32 s45, 1, s44")
    e("  s_andn2_b32 s42, s42, s45")
    e("  s_lshl_b32 s45, s44, 8                ; j*256")
    for sp in range(4):
        e(f"  buffer_load_dwordx2 v[{24+2*sp}:{25+2*sp}], v20, s[52:55], s45 offen offset:{1024*sp} {LPOL}")
    e("  s_lshl_b32 s45, s44, 14")
    e("  s_add_u32 s45, s45, s40")
    for sp in range(4):
        bb = 32 + 8*sp
        e(f"  buffer_load_dwordx4 v[{bb}:{bb+3}], v8, s[48:51], s45 offen {LPOL}")
        e(f"  buffer_load_dwordx4 v[{bb+4}:{bb+7}], v8, s[48:51], s45 offen offset:1024 {LPOL}")
        if sp < 3: e("  s_add_u32 s45, s45, 65536")
    e("  s_waitcnt vmcnt(8)")
    e("  v_max_f32 v16, v24, v26")
    e("  v_max3_f32 v16, v16, v28, v30")
    for sp in range(4):
        e(f"  v_sub_f32 v{24+2*sp}, v{24+2*sp}, v16")
    for sp in range(4):
        e(f"  v_exp_f32 v{24+2*sp}, v{24+2*sp}")
    e("  s_nop 0")
    e("  v_mul_f32 v17, v24, v25")
    e("  v_fma_f32 v17, v26, v27, v17")
    e("  v_fma_f32 v17, v28, v29, v17")
    e("  v_fma_f32 v17, v30, v31, v17")
    e("  v_rcp_f32 v17, v17")
    e("  s_nop 0")
    for sp in range(4):
        e(f"  v_mul_f32 v{24+2*sp}, v{24+2*sp}, v17")
    e("  s_waitcnt vmcnt(0)")
    for r in range(8):
        e(f"  v_mul_f32 v{32+r}, v24, v{32+r}")
    for sp in range(1, 4):
        for r in range(8):
            e(f"  v_fma_f32 v{32+r}, v{24+2*sp}, v{32+8*sp+r}, v{32+r}")
    for j in range(4):
        e(f"  v_cvt_pk_bf16_f32 v{64+j}, v{32+2*j}, v{33+2*j}")
    e("  s_nop 1")
    e("  v_permlane32_swap_b32 v64, v66")
    e("  v_permlane32_swap_b32 v65, v67")
    e("  s_lshl_b32 s46, s58, 2")
    e("  s_add_u32 s46, s46, s44")
    e("  s_lshl_b32 s46, s46, 13")
    e("  s_add_u32 s28, s12, s46")
    e("  s_addc_u32 s29, s13, 0")
    e("  s_mov_b32 s30, 8192")
    e("  s_mov_b32 s31, 0x00020000")
    e("  buffer_store_dwordx4 v[64:67], v7, s[28:31], 0 offen")
    e("  s_cmp_lg_u32 s42, 0")
    e("  s_cbranch_scc1 L_finloop")
    if STAMP:
        e("  s_waitcnt vmcnt(0)")
        stamp()
        e("  s_waitcnt lgkmcnt(0)")
        e("  s_lshl_b32 s46, s2, 3")
        e("  s_add_u32 s46, s46, s20")
        e("  s_lshl_b32 s46, s46, 8")
        e("  s_add_u32 s46, s46, 0x2000000")
        e("  s_add_u32 s48, s10, s46")
        e("  s_addc_u32 s49, s11, 0")
        e("  s_mov_b32 s50, 256")
        e("  s_mov_b32 s51, 0x00020000")
        e("  v_mov_b32 v3, 0")
        for i_ in range(nstamp[0]):
            e(f"  v_mov_b32 v4, s{66+2*i_}")
            e(f"  v_mov_b32 v5, s{67+2*i_}")
            e(f"  buffer_store_dwordx2 v[4:5], v3, s[48:51], 0 offen offset:{8*i_}")
    e("L_done:")
    e("  s_endpgm")

e(HEADER.rstrip())
e(f"; @launch grid=(256,1,1) block=(512,1,1) lds={XLDS+64+4096}")
e('.amdgcn_target "amdgcn-amd-amdhsa--gfx950"')
e(".text")
kernel()
e('.section .rodata,"a"')
e(".p2align 6")
e(f".amdhsa_kernel {NAME}")
e("  .amdhsa_next_free_vgpr 256")
e(f"  .amdhsa_next_free_sgpr {100 if STAMP else 72}")
e("  .amdhsa_accum_offset 256")
e("  .amdhsa_group_segment_fixed_size 0")
e("  .amdhsa_kernarg_size 48")
e("  .amdhsa_user_sgpr_count 2")
e("  .amdhsa_user_sgpr_kernarg_segment_ptr 1")
e("  .amdhsa_system_sgpr_workgroup_id_x 1")
e(".end_amdhsa_kernel")
open(sys.argv[1] if len(sys.argv) > 1 else "standalone__gqa_softmax__sampling.s", "w").write("\n".join(out) + "\n")
```

```python
import sys, os
POL = os.environ.get("POL", "nt")
PPOL = os.environ.get("PPOL", "sc1")
LPOL = os.environ.get("LPOL", "sc1")
STAMP = int(os.environ.get("STAMP", "0"))
PRIO = int(os.environ.get("PRIO", "1"))
FORCE_ABANDON = int(os.environ.get("FORCE_ABANDON", "0"))
nstamp = [0]
def stamp():
    if STAMP:
        i = nstamp[0]; nstamp[0] += 1
        e(f"  s_memtime s[{60+6+2*i}:{60+7+2*i}]")

HEADER = """; Kernarg layout for this problem (48 bytes, ptrs only, base s[0:1]):
"""
out = []
def e(s=""):
    out.append(s)

Q0 = 16; KF = 48; VF = 80; SA = 112; SB = 128; P0 = 144; O0 = 160
KA = 224; VA = 232; DK0, DK1, DV = 236, 237, 238
VM, VL = 239, 240
T0 = 241
ML_OFF = 16 * 1024 * 1024
FLAG_OFF = 17 * 1024 * 1024
XLDS = 131072
NAME = "standalone__gqa_softmax__sampling_kernel"

def dma_k(t):
    e(f"  s_add_u32 s38, s37, {(t&3)*16384}")
    e("  s_mov_b32 m0, s38")
    e(f"  s_mov_b32 s39, {t*16384}")
    e(f"  buffer_load_dwordx4 v{DK0}, s[28:31], s39 offen {POL} lds")
    e(f"  buffer_load_dwordx4 v{DK1}, s[28:31], s39 offen offset:1024 {POL} lds")
def dma_v(t):
    e(f"  s_add_u32 s38, s37, {65536+(t&3)*16384}")
    e("  s_mov_b32 m0, s38")
    e(f"  s_mov_b32 s39, {t*16384}")
    e(f"  buffer_load_dwordx4 v{DV}, s[32:35], s39 offen {POL} lds")
    e(f"  buffer_load_dwordx4 v{DV}, s[32:35], s39 offen offset:1024 {POL} lds")

WAITS = {0: 6, 6: 6, 7: 4, 8: 2, 9: 0}
def top(i):
    n = WAITS.get(i, 8)
    e(f"  ; ---- interval {i} ----")
    e(f"  s_waitcnt vmcnt({n})")
    e("  s_barrier")
    if i in (0, 1, 9): stamp()
    if i + 3 <= 7: dma_k(i + 3)
    if i + 1 <= 7: dma_v(i + 1)

def vread1(slot, s, idx):
    t, ee = idx >> 1, idx & 1
    bb = VF + (s & 1)*16 + t*4 + 2*ee
    e(f"  ds_read_b64_tr_b16 v[{bb}:{bb+1}], v{VA+t} offset:{slot+(16*s+8*ee)*256}")
def vreads(slot, s):
    for idx in range(8): vread1(slot, s, idx)
def pvm(s):
    for t in range(4):
        bb = VF + (s & 1)*16 + t*4
        e(f"  v_mfma_f32_32x32x16_bf16 v[{O0+16*t}:{O0+16*t+15}], v[{bb}:{bb+3}], v[{P0+4*s}:{P0+4*s+3}], v[{O0+16*t}:{O0+16*t+15}]")

def mfma_phase(tk, tv):
    if PRIO: e("  s_setprio 1")
    vs = None if tv is None else (tv & 3) * 16384
    if tk is not None:
        slot = (tk & 3) * 16384
        for st in range(8):
            e(f"  ds_read_b128 v[{KF+4*st}:{KF+4*st+3}], v{KA+st} offset:{slot}")
        for st in range(8):
            e("  s_waitcnt lgkmcnt(7)")
            c = "0" if st == 0 else f"v[{SA}:{SA+15}]"
            e(f"  v_mfma_f32_32x32x16_bf16 v[{SA}:{SA+15}], v[{KF+4*st}:{KF+4*st+3}], v[{Q0+4*st}:{Q0+4*st+3}], {c}")
            e(f"  ds_read_b128 v[{KF+4*st}:{KF+4*st+3}], v{KA+st} offset:{slot+8192}")
        for st in range(8):
            if tv is not None:
                e(f"  s_waitcnt lgkmcnt({min(7+st, 13)})" if st < 7 else "  s_waitcnt lgkmcnt(13)")
            else:
                e(f"  s_waitcnt lgkmcnt({7-st})")
            c = "0" if st == 0 else f"v[{SB}:{SB+15}]"
            e(f"  v_mfma_f32_32x32x16_bf16 v[{SB}:{SB+15}], v[{KF+4*st}:{KF+4*st+3}], v[{Q0+4*st}:{Q0+4*st+3}], {c}")
            if tv is not None:
                vread1(vs, st >> 2, 2*(st & 3)); vread1(vs, st >> 2, 2*(st & 3) + 1)
    elif tv is not None:
        vreads(vs, 0); vreads(vs, 1)
    if tv is not None:
        e("  s_waitcnt lgkmcnt(8)"); pvm(0)
        vreads(vs, 2)
        e("  s_waitcnt lgkmcnt(8)"); pvm(1)
        vreads(vs, 3)
        e("  s_waitcnt lgkmcnt(8)"); pvm(2)
        e("  s_waitcnt lgkmcnt(0)"); pvm(3)
    if PRIO: e("  s_setprio 0")

def valu_phase(lab):
    a = lambda i: f"v{SA+i}"
    b = lambda i: f"v{SB+i}"
    t_ = lambda i: f"v{T0+i}"
    e(f"  v_max3_f32 {t_(0)}, {a(0)}, {a(1)}, {a(2)}")
    e(f"  v_max3_f32 {t_(1)}, {a(3)}, {a(4)}, {a(5)}")
    e(f"  v_max3_f32 {t_(2)}, {a(6)}, {a(7)}, {a(8)}")
    e(f"  v_max3_f32 {t_(3)}, {a(9)}, {a(10)}, {a(11)}")
    e(f"  v_max3_f32 {t_(4)}, {a(12)}, {a(13)}, {a(14)}")
    e(f"  v_max3_f32 {t_(0)}, {t_(0)}, {t_(1)}, {a(15)}")
    e(f"  v_max3_f32 {t_(2)}, {t_(2)}, {t_(3)}, {t_(4)}")
    e(f"  v_max3_f32 {t_(1)}, {b(0)}, {b(1)}, {b(2)}")
    e(f"  v_max3_f32 {t_(3)}, {b(3)}, {b(4)}, {b(5)}")
    e(f"  v_max3_f32 {t_(4)}, {b(6)}, {b(7)}, {b(8)}")
    e(f"  v_max3_f32 {t_(5)}, {b(9)}, {b(10)}, {b(11)}")
    e(f"  v_max3_f32 {t_(6)}, {b(12)}, {b(13)}, {b(14)}")
    e(f"  v_max3_f32 {t_(0)}, {t_(0)}, {t_(2)}, {b(15)}")
    e(f"  v_max3_f32 {t_(1)}, {t_(1)}, {t_(3)}, {t_(4)}")
    e(f"  v_max3_f32 {t_(0)}, {t_(0)}, {t_(5)}, {t_(6)}")
    e(f"  v_max_f32 {t_(0)}, {t_(0)}, {t_(1)}")
    e(f"  v_mov_b32 {t_(1)}, {t_(0)}")
    e(f"  v_add_f32 {t_(2)}, s57, v{VM}")
    e("  s_nop 0")
    e(f"  v_permlane32_swap_b32 {t_(0)}, {t_(1)}")
    e(f"  v_max_f32 {t_(0)}, {t_(0)}, {t_(1)}")
    e(f"  v_mul_f32 {t_(0)}, s41, {t_(0)}")
    e(f"  v_cmp_gt_f32 vcc, {t_(0)}, {t_(2)}")
    e("  s_nop 1")
    e(f"  s_cbranch_vccz L_skip_{lab}")
    e(f"  v_max_f32 {t_(0)}, v{VM}, {t_(0)}")
    e(f"  v_sub_f32 {t_(1)}, v{VM}, {t_(0)}")
    e(f"  v_exp_f32 {t_(1)}, {t_(1)}")
    e(f"  v_mov_b32 v{VM}, {t_(0)}")
    for r in range(64):
        e(f"  v_mul_f32 v{O0+r}, {t_(1)}, v{O0+r}")
    e(f"  v_mul_f32 v{VL}, {t_(1)}, v{VL}")
    e(f"L_skip_{lab}:")
    for i in range(16):
        e(f"  v_fma_f32 {a(i)}, {a(i)}, s41, -v{VM}")
    for i in range(16):
        e(f"  v_exp_f32 {a(i)}, {a(i)}")
    for i in range(16):
        e(f"  v_fma_f32 {b(i)}, {b(i)}, s41, -v{VM}")
    for i in range(16):
        e(f"  v_exp_f32 {b(i)}, {b(i)}")
        if i % 2 == 1:
            j = i - 1
            e(f"  v_add_f32 {t_(j%4)}, {a(j)}, {a(j+1)}")
            e(f"  v_cvt_pk_bf16_f32 v{P0+j//2}, {a(j)}, {a(j+1)}")
            e(f"  v_add_f32 v{VL}, v{VL}, {t_(j%4)}")
    for i in range(0, 16, 2):
        e(f"  v_add_f32 {t_(i%4)}, {b(i)}, {b(i+1)}")
        e(f"  v_cvt_pk_bf16_f32 v{P0+8+i//2}, {b(i)}, {b(i+1)}")
        e(f"  v_add_f32 v{VL}, v{VL}, {t_(i%4)}")

def kernel():
    e(f".globl {NAME}")
    e(".p2align 8")
    e(f".type {NAME},@function")
    e(f"{NAME}:")
    e("  s_cmp_ge_u32 s2, 256")
    e("  s_cbranch_scc1 L_done")
    e("  s_load_dwordx4 s[4:7], s[0:1], 0      ; q, k")
    e("  s_load_dwordx2 s[8:9], s[0:1], 16     ; v")
    e("  s_load_dwordx4 s[12:15], s[0:1], 24")
    e("  s_load_dwordx2 s[10:11], s[0:1], 40   ; ws")
    e("  v_lshrrev_b32 v1, 6, v0")
    e("  v_and_b32 v2, 63, v0                  ; lane")
    e("  v_readfirstlane_b32 s20, v1")
    e("  s_nop 3")
    e("  s_and_b32 s21, s20, 3                 ; q tile")
    e("  s_lshr_b32 s22, s20, 2                ; group")
    e("  s_lshr_b32 s58, s2, 2                 ; g")
    e("  s_and_b32 s59, s2, 3                  ; split")
    e("  v_and_b32 v3, 31, v2                  ; l&31")
    e("  v_lshrrev_b32 v4, 5, v2               ; h")
    e("  v_and_b32 v5, 15, v2                  ; i = l&15")
    e("  v_lshrrev_b32 v6, 4, v2               ; g = l>>4")
    e("  s_lshl_b32 s36, s20, 3")
    e("  v_add_u32 v8, s36, v6")
    e("  v_and_b32 v9, 15, v8")
    e("  v_xor_b32 v9, v9, v5")
    e(f"  v_lshlrev_b32 v{DK0}, 8, v8")
    e(f"  v_lshl_add_u32 v{DK0}, v9, 4, v{DK0}")
    e("  v_add_u32 v10, 4, v8")
    e("  v_and_b32 v9, 15, v10")
    e("  v_xor_b32 v9, v9, v5")
    e(f"  v_lshlrev_b32 v{DK1}, 8, v10")
    e(f"  v_lshl_add_u32 v{DK1}, v9, 4, v{DK1}")
    e(f"  v_subrev_u32 v{DK1}, 1024, v{DK1}")
    e("  v_lshlrev_b32 v9, 2, v6")
    e("  v_xor_b32 v9, v9, v5")
    e(f"  v_lshlrev_b32 v{DV}, 8, v8")
    e(f"  v_lshl_add_u32 v{DV}, v9, 4, v{DV}")
    e("  s_lshl_b32 s37, s20, 11")
    e("  s_lshl_b32 s23, s2, 17")
    e("  s_waitcnt lgkmcnt(0)")
    e("  s_lshl_b32 s24, s58, 2")
    e("  s_add_u32 s60, s14, s24")
    e("  s_addc_u32 s61, s15, 0")
    e("  s_mov_b32 s62, 4")
    e("  s_mov_b32 s63, 0x00020000")
    e("  v_lshlrev_b32 v15, 2, v2")
    e("  s_cmp_lg_u32 s20, 0")
    e("  s_cbranch_scc1 L_noarrive")
    e("  s_lshl_b32 s24, s2, 7")
    e(f"  s_add_u32 s24, s24, {FLAG_OFF}")
    e("  s_add_u32 s16, s10, s24")
    e("  s_addc_u32 s17, s11, 0")
    e("  s_mov_b32 s18, 4")
    e("  s_mov_b32 s19, 0x00020000")
    e("  v_mov_b32 v14, 0")
    e("  buffer_store_dword v14, v15, s[16:19], 0 offen sc1")
    e("L_noarrive:")
    e("  s_add_u32 s28, s6, s23")
    e("  s_addc_u32 s29, s7, 0")
    e("  s_mov_b32 s30, 131072")
    e("  s_mov_b32 s31, 0x00020000")
    dma_k(0)
    e("  s_add_u32 s32, s8, s23")
    e("  s_addc_u32 s33, s9, 0")
    e("  s_mov_b32 s34, 131072")
    e("  s_mov_b32 s35, 0x00020000")
    e("  s_lshl_b32 s23, s58, 2")
    e("  s_add_u32 s23, s23, s21")
    e("  s_lshl_b32 s23, s23, 13")
    e("  s_add_u32 s24, s4, s23")
    e("  s_addc_u32 s25, s5, 0")
    e("  s_mov_b32 s26, 8192")
    e("  s_mov_b32 s27, 0x00020000")
    e("  v_lshlrev_b32 v7, 8, v3")
    e("  v_lshl_add_u32 v7, v4, 4, v7")
    for st in range(8):
        e(f"  buffer_load_dwordx4 v[{Q0+4*st}:{Q0+4*st+3}], v7, s[24:27], 0 offen offset:{32*st}")
    dma_k(1); dma_v(0); dma_k(2)
    e("  v_lshlrev_b32 v8, 8, v3")
    for st in range(8):
        e(f"  v_add_u32 v9, {2*st}, v4")
        e("  v_xor_b32 v9, v9, v5")
        e(f"  v_lshl_add_u32 v{KA+st}, v9, 4, v8")
    e("  v_lshrrev_b32 v9, 2, v5")
    e("  v_lshl_add_u32 v10, v4, 2, v9")
    e("  v_lshlrev_b32 v10, 8, v10")
    e("  v_add_u32 v10, 0x10000, v10")
    e("  v_and_b32 v11, 1, v6")
    e("  v_lshl_add_u32 v10, v11, 5, v10")
    e("  v_and_b32 v11, 3, v5")
    e("  v_lshl_add_u32 v10, v11, 3, v10")
    for t in range(4):
        e(f"  v_xor_b32 v11, {t}, v9")
        e(f"  v_lshl_add_u32 v{VA+t}, v11, 6, v10")
    for r in range(64):
        e(f"  v_mov_b32 v{O0+r}, 0")
    e(f"  v_mov_b32 v{VM}, 0xff800000")
    e(f"  v_mov_b32 v{VL}, 0")
    e("  s_mov_b32 s41, 0x3e0293ee")
    e("  s_mov_b32 s57, 0x41000000             ; T = 8")
    stamp()
    e("  s_cmp_ge_u32 s22, 1")
    e("  s_cbranch_scc1 L_groupB")
    e("  ; ---- interval 0 (A) ----")
    e("  s_waitcnt vmcnt(6)")
    e("  s_cmp_lg_u32 s20, 0")
    e("  s_cbranch_scc1 L_noarr2")
    e("  v_mov_b32 v14, 1")
    e("  buffer_atomic_add v14, v15, s[60:63], 0 offen sc1")
    e("L_noarr2:")
    e("  s_barrier")
    stamp()
    dma_k(3); dma_v(1)
    mfma_phase(0, None)
    for j in range(4):
        top(2*j+1); valu_phase(f"a{j}")
        top(2*j+2); mfma_phase(2*j+2 if j < 3 else None, 2*j)
    top(9)
    e("  s_branch L_epi")
    e("L_groupB:")
    nstamp[0] = 1
    top(0)
    top(1); mfma_phase(1, None)
    for j in range(4):
        top(2*j+2); valu_phase(f"b{j}")
        top(2*j+3); mfma_phase(2*j+3 if j < 3 else None, 2*j+1)
    e("L_epi:")
    stamp()
    t_ = lambda i: f"v{T0+i}"
    e(f"  v_mov_b32 {t_(1)}, v{VL}")
    e("  s_nop 7")
    e("  s_nop 7")
    e(f"  v_permlane32_swap_b32 v{VL}, {t_(1)}")
    e(f"  v_add_f32 v{VL}, v{VL}, {t_(1)}")
    e("  s_barrier")
    stamp()
    e("  s_lshl_b32 s43, s20, 14")
    e("  v_lshlrev_b32 v8, 4, v2")
    e("  v_add_u32 v9, s43, v8")
    for qd in range(16):
        e(f"  ds_write_b128 v9, v[{O0+4*qd}:{O0+4*qd+3}] offset:{1024*qd}")
    e("  s_lshl_b32 s43, s20, 9")
    e("  v_lshlrev_b32 v10, 3, v2")
    e("  v_add_u32 v11, s43, v10")
    e(f"  v_add_u32 v11, {XLDS+64}, v11")
    e(f"  v_mov_b32 v12, v{VM}")
    e(f"  v_mov_b32 v13, v{VL}")
    e("  ds_write_b64 v11, v[12:13]")
    e("  s_waitcnt lgkmcnt(0)")
    stamp()
    e("  s_barrier")
    stamp()
    e("  s_lshl_b32 s43, s20, 11")
    e("  v_add_u32 v9, s43, v8                 ; + lane*16")
    e(f"  v_add_u32 v10, {XLDS+64}, v10")
    e("  s_lshl_b32 s46, s2, 16")
    e("  s_add_u32 s48, s10, s46")
    e("  s_addc_u32 s49, s11, 0")
    e("  s_mov_b32 s50, 65536")
    e("  s_mov_b32 s51, 0x00020000")
    def rd(j):
        rb = 16 + 16*j; mb = 80 + 4*j
        e(f"  ds_read_b64 v[{mb}:{mb+1}], v10 offset:{j*512}")
        e(f"  ds_read_b64 v[{mb+2}:{mb+3}], v10 offset:{(j+4)*512}")
        e(f"  v_add_u32 v14, {j*16384}, v9")
        e(f"  ds_read_b128 v[{rb}:{rb+3}], v14")
        e(f"  ds_read_b128 v[{rb+4}:{rb+7}], v14 offset:1024")
        e(f"  v_add_u32 v14, {(j+4)*16384}, v9")
        e(f"  ds_read_b128 v[{rb+8}:{rb+11}], v14")
        e(f"  ds_read_b128 v[{rb+12}:{rb+15}], v14 offset:1024")
    rd(0); rd(1)
    for j in range(4):
        rb = 16 + 16*j; mb = 80 + 4*j
        e(f"  s_waitcnt lgkmcnt({6 if j < 3 else 0})")
        if j + 2 < 4: rd(j + 2)
        e(f"  v_max_f32 v100, v{mb}, v{mb+2}")
        e(f"  v_sub_f32 v101, v{mb}, v100")
        e(f"  v_sub_f32 v102, v{mb+2}, v100")
        e("  v_exp_f32 v101, v101")
        e("  v_exp_f32 v102, v102")
        e("  s_nop 0")
        e(f"  v_mul_f32 v103, v101, v{mb+1}")
        e(f"  v_fma_f32 v{mb+1}, v102, v{mb+3}, v103     ; L")
        e(f"  v_mov_b32 v{mb}, v100                       ; M")
        for r in range(8):
            e(f"  v_mul_f32 v{rb+r}, v101, v{rb+r}")
            e(f"  v_fma_f32 v{rb+r}, v102, v{rb+8+r}, v{rb+r}")
        e(f"  s_add_u32 s46, s43, {j*16384}")
        e(f"  buffer_store_dwordx4 v[{rb}:{rb+3}], v8, s[48:51], s46 offen {PPOL}")
        e(f"  buffer_store_dwordx4 v[{rb+4}:{rb+7}], v8, s[48:51], s46 offen offset:1024 {PPOL}")
    e("  s_cmp_lg_u32 s20, 0")
    e("  s_cbranch_scc1 L_noml")
    e("  s_lshl_b32 s46, s2, 10")
    e(f"  s_add_u32 s46, s46, {ML_OFF}")
    e("  s_add_u32 s52, s10, s46")
    e("  s_addc_u32 s53, s11, 0")
    e("  v_lshlrev_b32 v14, 3, v2")
    e("  s_mov_b32 s55, 0x00020000")
    for j in range(4):
        mb = 80 + 4*j
        e(f"  s_mov_b32 s54, {(j+1)*256}") if False else None
    e("  s_mov_b32 s54, 1024")
    e("  v_cmp_gt_u32 vcc, 32, v2")
    e("  s_and_saveexec_b64 s[44:45], vcc")
    for j in range(4):
        mb = 80 + 4*j
        e(f"  buffer_store_dwordx2 v[{mb}:{mb+1}], v14, s[52:55], 0 offen offset:{j*256} {PPOL}")
    e("  s_mov_b64 exec, s[44:45]")
    e("  buffer_load_dword v104, v15, s[60:63], 0 offen sc1")
    e("L_noml:")
    stamp()
    e("  s_waitcnt vmcnt(0)")
    stamp()
    e("  s_barrier")
    stamp()
    e("  s_cmp_lg_u32 s20, 0")
    e("  s_cbranch_scc1 L_w_notzero")
    e("  v_readfirstlane_b32 s46, v104")
    e("  s_and_b32 s46, s46, 0xff")
    if FORCE_ABANDON:
        e("  s_cmp_lg_u32 s59, 1")
    else:
        e("  s_cmp_lg_u32 s46, 4")
    e("  s_cselect_b32 s47, 2, 1")
    e("  v_mov_b32 v104, s47")
    e("  buffer_store_dword v104, v15, s[16:19], 0 offen sc1")
    e("  s_cmp_eq_u32 s47, 2")
    e("  s_cbranch_scc1 L_bcast0")
    e("  s_lshl_b32 s24, s58, 9")
    e(f"  s_add_u32 s24, s24, {FLAG_OFF}")
    e("  s_add_u32 s16, s10, s24")
    e("  s_addc_u32 s17, s11, 0")
    e("  s_mov_b32 s18, 512")
    e("  v_lshlrev_b32 v105, 7, v2")
    e("L_poll:")
    e("  buffer_load_dword v104, v105, s[16:19], 0 offen sc1")
    e("  s_waitcnt vmcnt(0)")
    e("  v_readlane_b32 s24, v104, 0")
    e("  v_readlane_b32 s25, v104, 1")
    e("  v_readlane_b32 s26, v104, 2")
    e("  v_readlane_b32 s27, v104, 3")
    e("  s_nop 3")
    e("  s_min_u32 s44, s24, s25")
    e("  s_min_u32 s45, s26, s27")
    e("  s_min_u32 s44, s44, s45")
    e("  s_cmp_eq_u32 s44, 0")
    e("  s_cbranch_scc0 L_polldone")
    e("  s_sleep 2")
    e("  s_branch L_poll")
    e("L_polldone:")
    e("  s_lshl_b32 s42, 1, s59")
    e("  s_mov_b32 s44, 0")
    e("  s_mov_b32 s45, 0")
    for sp, r in enumerate(("s24", "s25", "s26", "s27")):
        e(f"  s_cmp_eq_u32 {r}, 2")
        e(f"  s_cselect_b32 s46, {1 << sp}, 0")
        e(f"  s_cselect_b32 s47, 0, {1 << sp}")
        e("  s_or_b32 s44, s44, s46")
        e("  s_or_b32 s45, s45, s47")
    e("  s_ff1_i32_b32 s46, s45")
    e("  s_cmp_eq_u32 s46, s59")
    e("  s_cselect_b32 s46, s44, 0")
    e("  s_or_b32 s42, s42, s46")
    e("  s_branch L_bcast")
    e("L_bcast0:")
    e("  s_mov_b32 s42, 0")
    e("L_bcast:")
    e(f"  v_mov_b32 v105, {XLDS}")
    e("  v_mov_b32 v106, s42")
    e("  ds_write_b32 v105, v106")
    e("  s_waitcnt lgkmcnt(0)")
    e("L_w_notzero:")
    e("  s_barrier")
    e(f"  v_mov_b32 v105, {XLDS}")
    e("  ds_read_b32 v106, v105")
    e("  s_waitcnt lgkmcnt(0)")
    e("  v_readfirstlane_b32 s42, v106")
    e("  s_nop 3")
    e("  s_cmp_eq_u32 s42, 0")
    e("  s_cbranch_scc1 L_done")
    e("L_fin:")
    stamp()
    e("  s_lshl_b32 s46, s58, 18")
    e("  s_add_u32 s48, s10, s46")
    e("  s_addc_u32 s49, s11, 0")
    e("  s_mov_b32 s50, 262144")
    e("  s_lshl_b32 s46, s58, 12")
    e(f"  s_add_u32 s46, s46, {ML_OFF}")
    e("  s_add_u32 s52, s10, s46")
    e("  s_addc_u32 s53, s11, 0")
    e("  s_mov_b32 s54, 4096")
    e("  s_mov_b32 s55, 0x00020000")
    e("  v_and_b32 v20, 31, v2")
    e("  v_lshlrev_b32 v20, 3, v20")
    e("  s_lshl_b32 s40, s20, 11               ; w*2048")
    e("  v_lshrrev_b32 v6, 5, v2")
    e("  v_and_b32 v7, 31, v2")
    e("  v_lshlrev_b32 v7, 8, v7")
    e("  v_lshl_add_u32 v7, v6, 4, v7          ; q*256 + h*16")
    e("  s_lshl_b32 s46, s20, 5")
    e("  v_add_u32 v7, s46, v7")
    e("L_finloop:")
    e("  s_ff1_i32_b32 s44, s42                ; j")
    e("  s_lshl_b32 s45, 1, s44")
    e("  s_andn2_b32 s42, s42, s45")
    e("  s_lshl_b32 s45, s44, 8                ; j*256")
    for sp in range(4):
        e(f"  buffer_load_dwordx2 v[{24+2*sp}:{25+2*sp}], v20, s[52:55], s45 offen offset:{1024*sp} {LPOL}")
    e("  s_lshl_b32 s45, s44, 14")
    e("  s_add_u32 s45, s45, s40")
    for sp in range(4):
        bb = 32 + 8*sp
        e(f"  buffer_load_dwordx4 v[{bb}:{bb+3}], v8, s[48:51], s45 offen {LPOL}")
        e(f"  buffer_load_dwordx4 v[{bb+4}:{bb+7}], v8, s[48:51], s45 offen offset:1024 {LPOL}")
        if sp < 3: e("  s_add_u32 s45, s45, 65536")
    e("  s_waitcnt vmcnt(8)")
    e("  v_max_f32 v16, v24, v26")
    e("  v_max3_f32 v16, v16, v28, v30")
    for sp in range(4):
        e(f"  v_sub_f32 v{24+2*sp}, v{24+2*sp}, v16")
    for sp in range(4):
        e(f"  v_exp_f32 v{24+2*sp}, v{24+2*sp}")
    e("  s_nop 0")
    e("  v_mul_f32 v17, v24, v25")
    e("  v_fma_f32 v17, v26, v27, v17")
    e("  v_fma_f32 v17, v28, v29, v17")
    e("  v_fma_f32 v17, v30, v31, v17")
    e("  v_rcp_f32 v17, v17")
    e("  s_nop 0")
    for sp in range(4):
        e(f"  v_mul_f32 v{24+2*sp}, v{24+2*sp}, v17")
    e("  s_waitcnt vmcnt(0)")
    for r in range(8):
        e(f"  v_mul_f32 v{32+r}, v24, v{32+r}")
    for sp in range(1, 4):
        for r in range(8):
            e(f"  v_fma_f32 v{32+r}, v{24+2*sp}, v{32+8*sp+r}, v{32+r}")
    for j in range(4):
        e(f"  v_cvt_pk_bf16_f32 v{64+j}, v{32+2*j}, v{33+2*j}")
    e("  s_nop 1")
    e("  v_permlane32_swap_b32 v64, v66")
    e("  v_permlane32_swap_b32 v65, v67")
    e("  s_lshl_b32 s46, s58, 2")
    e("  s_add_u32 s46, s46, s44")
    e("  s_lshl_b32 s46, s46, 13")
    e("  s_add_u32 s28, s12, s46")
    e("  s_addc_u32 s29, s13, 0")
    e("  s_mov_b32 s30, 8192")
    e("  s_mov_b32 s31, 0x00020000")
    e("  buffer_store_dwordx4 v[64:67], v7, s[28:31], 0 offen")
    e("  s_cmp_lg_u32 s42, 0")
    e("  s_cbranch_scc1 L_finloop")
    if STAMP:
        e("  s_waitcnt vmcnt(0)")
        stamp()
        e("  s_waitcnt lgkmcnt(0)")
        e("  s_lshl_b32 s46, s2, 3")
        e("  s_add_u32 s46, s46, s20")
        e("  s_lshl_b32 s46, s46, 8")
        e("  s_add_u32 s46, s46, 0x2000000")
        e("  s_add_u32 s48, s10, s46")
        e("  s_addc_u32 s49, s11, 0")
        e("  s_mov_b32 s50, 256")
        e("  s_mov_b32 s51, 0x00020000")
        e("  v_mov_b32 v3, 0")
        for i_ in range(nstamp[0]):
            e(f"  v_mov_b32 v4, s{66+2*i_}")
            e(f"  v_mov_b32 v5, s{67+2*i_}")
            e(f"  buffer_store_dwordx2 v[4:5], v3, s[48:51], 0 offen offset:{8*i_}")
    e("L_done:")
    e("  s_endpgm")

e(HEADER.rstrip())
e(f"; @launch grid=(256,1,1) block=(512,1,1) lds={XLDS+64+4096}")
e('.amdgcn_target "amdgcn-amd-amdhsa--gfx950"')
e(".text")
kernel()
e('.section .rodata,"a"')
e(".p2align 6")
e(f".amdhsa_kernel {NAME}")
e("  .amdhsa_next_free_vgpr 256")
e(f"  .amdhsa_next_free_sgpr {102 if STAMP else 72}")
e("  .amdhsa_accum_offset 256")
e("  .amdhsa_group_segment_fixed_size 0")
e("  .amdhsa_kernarg_size 48")
e("  .amdhsa_user_sgpr_count 2")
e("  .amdhsa_user_sgpr_kernarg_segment_ptr 1")
e("  .amdhsa_system_sgpr_workgroup_id_x 1")
e(".end_amdhsa_kernel")
open(sys.argv[1] if len(sys.argv) > 1 else "standalone__gqa_softmax__sampling.s", "w").write("\n".join(out) + "\n")
```

```python
import sys, os
POL = os.environ.get("POL", "nt")
PPOL = os.environ.get("PPOL", "sc1")
LPOL = os.environ.get("LPOL", "sc1")
STAMP = int(os.environ.get("STAMP", "0"))
PRIO = int(os.environ.get("PRIO", "1"))
FORCE_ABANDON = int(os.environ.get("FORCE_ABANDON", "0"))
nstamp = [0]
def stamp():
    if STAMP:
        i = nstamp[0]; nstamp[0] += 1
        e(f"  s_memtime s[{60+6+2*i}:{60+7+2*i}]")

HEADER = """; Kernarg layout for this problem (48 bytes, ptrs only, base s[0:1]):
"""
out = []
def e(s=""):
    out.append(s)

Q0 = 16; KF = 48; VF = 80; SA = 112; SB = 128; P0 = 144; O0 = 160
KA = 224; VA = 232; DK0, DK1, DV = 236, 237, 238
VM, VL = 239, 240
T0 = 241
ML_OFF = 16 * 1024 * 1024
FLAG_OFF = 17 * 1024 * 1024
XLDS = 131072
NAME = "standalone__gqa_softmax__sampling_kernel"

def dma_k(t):
    e(f"  s_add_u32 s38, s37, {(t&3)*16384}")
    e("  s_mov_b32 m0, s38")
    e(f"  s_mov_b32 s39, {t*16384}")
    e(f"  buffer_load_dwordx4 v{DK0}, s[28:31], s39 offen {POL} lds")
    e(f"  buffer_load_dwordx4 v{DK1}, s[28:31], s39 offen offset:1024 {POL} lds")
def dma_v(t):
    e(f"  s_add_u32 s38, s37, {65536+(t&3)*16384}")
    e("  s_mov_b32 m0, s38")
    e(f"  s_mov_b32 s39, {t*16384}")
    e(f"  buffer_load_dwordx4 v{DV}, s[32:35], s39 offen {POL} lds")
    e(f"  buffer_load_dwordx4 v{DV}, s[32:35], s39 offen offset:1024 {POL} lds")

WAITS = {0: 6, 6: 6, 7: 4, 8: 2, 9: 0}
def top(i):
    n = WAITS.get(i, 8)
    e(f"  ; ---- interval {i} ----")
    e(f"  s_waitcnt vmcnt({n})")
    e("  s_barrier")
    if i in (0, 1, 9): stamp()
    if i + 3 <= 7: dma_k(i + 3)
    if i + 1 <= 7: dma_v(i + 1)

def vread1(slot, s, idx):
    t, ee = idx >> 1, idx & 1
    bb = VF + (s & 1)*16 + t*4 + 2*ee
    e(f"  ds_read_b64_tr_b16 v[{bb}:{bb+1}], v{VA+t} offset:{slot+(16*s+8*ee)*256}")
def vreads(slot, s):
    for idx in range(8): vread1(slot, s, idx)
def pvm(s):
    for t in range(4):
        bb = VF + (s & 1)*16 + t*4
        e(f"  v_mfma_f32_32x32x16_bf16 v[{O0+16*t}:{O0+16*t+15}], v[{bb}:{bb+3}], v[{P0+4*s}:{P0+4*s+3}], v[{O0+16*t}:{O0+16*t+15}]")

def mfma_phase(tk, tv):
    if PRIO: e("  s_setprio 1")
    vs = None if tv is None else (tv & 3) * 16384
    if tk is not None:
        slot = (tk & 3) * 16384
        for st in range(8):
            e(f"  ds_read_b128 v[{KF+4*st}:{KF+4*st+3}], v{KA+st} offset:{slot}")
        for st in range(8):
            e("  s_waitcnt lgkmcnt(7)")
            c = "0" if st == 0 else f"v[{SA}:{SA+15}]"
            e(f"  v_mfma_f32_32x32x16_bf16 v[{SA}:{SA+15}], v[{KF+4*st}:{KF+4*st+3}], v[{Q0+4*st}:{Q0+4*st+3}], {c}")
            e(f"  ds_read_b128 v[{KF+4*st}:{KF+4*st+3}], v{KA+st} offset:{slot+8192}")
        for st in range(8):
            if tv is not None:
                e(f"  s_waitcnt lgkmcnt({min(7+st, 13)})" if st < 7 else "  s_waitcnt lgkmcnt(13)")
            else:
                e(f"  s_waitcnt lgkmcnt({7-st})")
            c = "0" if st == 0 else f"v[{SB}:{SB+15}]"
            e(f"  v_mfma_f32_32x32x16_bf16 v[{SB}:{SB+15}], v[{KF+4*st}:{KF+4*st+3}], v[{Q0+4*st}:{Q0+4*st+3}], {c}")
            if tv is not None:
                vread1(vs, st >> 2, 2*(st & 3)); vread1(vs, st >> 2, 2*(st & 3) + 1)
    elif tv is not None:
        vreads(vs, 0); vreads(vs, 1)
    if tv is not None:
        e("  s_waitcnt lgkmcnt(8)"); pvm(0)
        vreads(vs, 2)
        e("  s_waitcnt lgkmcnt(8)"); pvm(1)
        vreads(vs, 3)
        e("  s_waitcnt lgkmcnt(8)"); pvm(2)
        e("  s_waitcnt lgkmcnt(0)"); pvm(3)
    if PRIO: e("  s_setprio 0")

def valu_phase(lab):
    a = lambda i: f"v{SA+i}"
    b = lambda i: f"v{SB+i}"
    t_ = lambda i: f"v{T0+i}"
    e(f"  v_max3_f32 {t_(0)}, {a(0)}, {a(1)}, {a(2)}")
    e(f"  v_max3_f32 {t_(1)}, {a(3)}, {a(4)}, {a(5)}")
    e(f"  v_max3_f32 {t_(2)}, {a(6)}, {a(7)}, {a(8)}")
    e(f"  v_max3_f32 {t_(3)}, {a(9)}, {a(10)}, {a(11)}")
    e(f"  v_max3_f32 {t_(4)}, {a(12)}, {a(13)}, {a(14)}")
    e(f"  v_max3_f32 {t_(0)}, {t_(0)}, {t_(1)}, {a(15)}")
    e(f"  v_max3_f32 {t_(2)}, {t_(2)}, {t_(3)}, {t_(4)}")
    e(f"  v_max3_f32 {t_(1)}, {b(0)}, {b(1)}, {b(2)}")
    e(f"  v_max3_f32 {t_(3)}, {b(3)}, {b(4)}, {b(5)}")
    e(f"  v_max3_f32 {t_(4)}, {b(6)}, {b(7)}, {b(8)}")
    e(f"  v_max3_f32 {t_(5)}, {b(9)}, {b(10)}, {b(11)}")
    e(f"  v_max3_f32 {t_(6)}, {b(12)}, {b(13)}, {b(14)}")
    e(f"  v_max3_f32 {t_(0)}, {t_(0)}, {t_(2)}, {b(15)}")
    e(f"  v_max3_f32 {t_(1)}, {t_(1)}, {t_(3)}, {t_(4)}")
    e(f"  v_max3_f32 {t_(0)}, {t_(0)}, {t_(5)}, {t_(6)}")
    e(f"  v_max_f32 {t_(0)}, {t_(0)}, {t_(1)}")
    e(f"  v_mov_b32 {t_(1)}, {t_(0)}")
    e(f"  v_add_f32 {t_(2)}, s57, v{VM}")
    e("  s_nop 0")
    e(f"  v_permlane32_swap_b32 {t_(0)}, {t_(1)}")
    e(f"  v_max_f32 {t_(0)}, {t_(0)}, {t_(1)}")
    e(f"  v_mul_f32 {t_(0)}, s41, {t_(0)}")
    e(f"  v_cmp_gt_f32 vcc, {t_(0)}, {t_(2)}")
    e("  s_nop 1")
    e(f"  s_cbranch_vccz L_skip_{lab}")
    e(f"  v_max_f32 {t_(0)}, v{VM}, {t_(0)}")
    e(f"  v_sub_f32 {t_(1)}, v{VM}, {t_(0)}")
    e(f"  v_exp_f32 {t_(1)}, {t_(1)}")
    e(f"  v_mov_b32 v{VM}, {t_(0)}")
    for r in range(64):
        e(f"  v_mul_f32 v{O0+r}, {t_(1)}, v{O0+r}")
    e(f"  v_mul_f32 v{VL}, {t_(1)}, v{VL}")
    e(f"L_skip_{lab}:")
    for i in range(16):
        e(f"  v_fma_f32 {a(i)}, {a(i)}, s41, -v{VM}")
    for i in range(16):
        e(f"  v_exp_f32 {a(i)}, {a(i)}")
    for i in range(16):
        e(f"  v_fma_f32 {b(i)}, {b(i)}, s41, -v{VM}")
    for i in range(16):
        e(f"  v_exp_f32 {b(i)}, {b(i)}")
        if i % 2 == 1:
            j = i - 1
            e(f"  v_add_f32 {t_(j%4)}, {a(j)}, {a(j+1)}")
            e(f"  v_cvt_pk_bf16_f32 v{P0+j//2}, {a(j)}, {a(j+1)}")
            e(f"  v_add_f32 v{VL}, v{VL}, {t_(j%4)}")
    for i in range(0, 16, 2):
        e(f"  v_add_f32 {t_(i%4)}, {b(i)}, {b(i+1)}")
        e(f"  v_cvt_pk_bf16_f32 v{P0+8+i//2}, {b(i)}, {b(i+1)}")
        e(f"  v_add_f32 v{VL}, v{VL}, {t_(i%4)}")

def kernel():
    e(f".globl {NAME}")
    e(".p2align 8")
    e(f".type {NAME},@function")
    e(f"{NAME}:")
    e("  s_cmp_ge_u32 s2, 256")
    e("  s_cbranch_scc1 L_done")
    e("  s_load_dwordx4 s[4:7], s[0:1], 0      ; q, k")
    e("  s_load_dwordx2 s[8:9], s[0:1], 16     ; v")
    e("  s_load_dwordx4 s[12:15], s[0:1], 24")
    e("  s_load_dwordx2 s[10:11], s[0:1], 40   ; ws")
    e("  v_lshrrev_b32 v1, 6, v0")
    e("  v_and_b32 v2, 63, v0                  ; lane")
    e("  v_readfirstlane_b32 s20, v1")
    e("  s_nop 3")
    e("  s_and_b32 s21, s20, 3                 ; q tile")
    e("  s_lshr_b32 s22, s20, 2                ; group")
    e("  s_lshr_b32 s58, s2, 2                 ; g")
    e("  s_and_b32 s59, s2, 3                  ; split")
    e("  v_and_b32 v3, 31, v2                  ; l&31")
    e("  v_lshrrev_b32 v4, 5, v2               ; h")
    e("  v_and_b32 v5, 15, v2                  ; i = l&15")
    e("  v_lshrrev_b32 v6, 4, v2               ; g = l>>4")
    e("  s_lshl_b32 s36, s20, 3")
    e("  v_add_u32 v8, s36, v6")
    e("  v_and_b32 v9, 15, v8")
    e("  v_xor_b32 v9, v9, v5")
    e(f"  v_lshlrev_b32 v{DK0}, 8, v8")
    e(f"  v_lshl_add_u32 v{DK0}, v9, 4, v{DK0}")
    e("  v_add_u32 v10, 4, v8")
    e("  v_and_b32 v9, 15, v10")
    e("  v_xor_b32 v9, v9, v5")
    e(f"  v_lshlrev_b32 v{DK1}, 8, v10")
    e(f"  v_lshl_add_u32 v{DK1}, v9, 4, v{DK1}")
    e(f"  v_subrev_u32 v{DK1}, 1024, v{DK1}")
    e("  v_lshlrev_b32 v9, 2, v6")
    e("  v_xor_b32 v9, v9, v5")
    e(f"  v_lshlrev_b32 v{DV}, 8, v8")
    e(f"  v_lshl_add_u32 v{DV}, v9, 4, v{DV}")
    e("  s_lshl_b32 s37, s20, 11")
    e("  s_lshl_b32 s23, s2, 17")
    e("  s_waitcnt lgkmcnt(0)")
    e("  s_lshl_b32 s24, s58, 2")
    e("  s_add_u32 s60, s14, s24")
    e("  s_addc_u32 s61, s15, 0")
    e("  s_mov_b32 s62, 4")
    e("  s_mov_b32 s63, 0x00020000")
    e("  v_lshlrev_b32 v15, 2, v2")
    e("  s_cmp_lg_u32 s20, 0")
    e("  s_cbranch_scc1 L_noarrive")
    e("  s_lshl_b32 s24, s2, 7")
    e(f"  s_add_u32 s24, s24, {FLAG_OFF}")
    e("  s_add_u32 s16, s10, s24")
    e("  s_addc_u32 s17, s11, 0")
    e("  s_mov_b32 s18, 4")
    e("  s_mov_b32 s19, 0x00020000")
    e("  v_mov_b32 v14, 0")
    e("  buffer_store_dword v14, v15, s[16:19], 0 offen sc1")
    e("L_noarrive:")
    e("  s_add_u32 s28, s6, s23")
    e("  s_addc_u32 s29, s7, 0")
    e("  s_mov_b32 s30, 131072")
    e("  s_mov_b32 s31, 0x00020000")
    dma_k(0)
    e("  s_add_u32 s32, s8, s23")
    e("  s_addc_u32 s33, s9, 0")
    e("  s_mov_b32 s34, 131072")
    e("  s_mov_b32 s35, 0x00020000")
    e("  s_lshl_b32 s23, s58, 2")
    e("  s_add_u32 s23, s23, s21")
    e("  s_lshl_b32 s23, s23, 13")
    e("  s_add_u32 s24, s4, s23")
    e("  s_addc_u32 s25, s5, 0")
    e("  s_mov_b32 s26, 8192")
    e("  s_mov_b32 s27, 0x00020000")
    e("  v_lshlrev_b32 v7, 8, v3")
    e("  v_lshl_add_u32 v7, v4, 4, v7")
    for st in range(8):
        e(f"  buffer_load_dwordx4 v[{Q0+4*st}:{Q0+4*st+3}], v7, s[24:27], 0 offen offset:{32*st}")
    dma_k(1); dma_v(0); dma_k(2)
    e("  v_lshlrev_b32 v8, 8, v3")
    for st in range(8):
        e(f"  v_add_u32 v9, {2*st}, v4")
        e("  v_xor_b32 v9, v9, v5")
        e(f"  v_lshl_add_u32 v{KA+st}, v9, 4, v8")
    e("  v_lshrrev_b32 v9, 2, v5")
    e("  v_lshl_add_u32 v10, v4, 2, v9")
    e("  v_lshlrev_b32 v10, 8, v10")
    e("  v_add_u32 v10, 0x10000, v10")
    e("  v_and_b32 v11, 1, v6")
    e("  v_lshl_add_u32 v10, v11, 5, v10")
    e("  v_and_b32 v11, 3, v5")
    e("  v_lshl_add_u32 v10, v11, 3, v10")
    for t in range(4):
        e(f"  v_xor_b32 v11, {t}, v9")
        e(f"  v_lshl_add_u32 v{VA+t}, v11, 6, v10")
    for r in range(64):
        e(f"  v_mov_b32 v{O0+r}, 0")
    e(f"  v_mov_b32 v{VM}, 0xff800000")
    e(f"  v_mov_b32 v{VL}, 0")
    e("  s_mov_b32 s41, 0x3e0293ee")
    e("  s_mov_b32 s57, 0x41000000             ; T = 8")
    stamp()
    e("  s_cmp_ge_u32 s22, 1")
    e("  s_cbranch_scc1 L_groupB")
    e("  ; ---- interval 0 (A) ----")
    e("  s_waitcnt vmcnt(6)")
    e("  s_cmp_lg_u32 s20, 0")
    e("  s_cbranch_scc1 L_noarr2")
    e("  v_mov_b32 v14, 1")
    e("  buffer_atomic_add v14, v15, s[60:63], 0 offen sc1")
    e("L_noarr2:")
    e("  s_barrier")
    stamp()
    dma_k(3); dma_v(1)
    mfma_phase(0, None)
    for j in range(4):
        top(2*j+1); valu_phase(f"a{j}")
        top(2*j+2); mfma_phase(2*j+2 if j < 3 else None, 2*j)
    top(9)
    e("  s_branch L_epi")
    e("L_groupB:")
    nstamp[0] = 1
    top(0)
    top(1); mfma_phase(1, None)
    for j in range(4):
        top(2*j+2); valu_phase(f"b{j}")
        top(2*j+3); mfma_phase(2*j+3 if j < 3 else None, 2*j+1)
    e("L_epi:")
    stamp()
    t_ = lambda i: f"v{T0+i}"
    e("  s_cmp_lg_u32 s20, 0")
    e("  s_cbranch_scc1 L_nard")
    e("  buffer_load_dword v104, v15, s[60:63], 0 offen sc1")
    e("L_nard:")
    e(f"  v_mov_b32 {t_(1)}, v{VL}")
    e("  s_nop 7")
    e("  s_nop 7")
    e(f"  v_permlane32_swap_b32 v{VL}, {t_(1)}")
    e(f"  v_add_f32 v{VL}, v{VL}, {t_(1)}")
    e("  s_barrier")
    stamp()
    e("  s_lshl_b32 s43, s20, 14")
    e("  v_lshlrev_b32 v8, 4, v2")
    e("  v_add_u32 v9, s43, v8")
    for qd in range(16):
        e(f"  ds_write_b128 v9, v[{O0+4*qd}:{O0+4*qd+3}] offset:{1024*qd}")
    e("  s_lshl_b32 s43, s20, 9")
    e("  v_lshlrev_b32 v10, 3, v2")
    e("  v_add_u32 v11, s43, v10")
    e(f"  v_add_u32 v11, {XLDS+64}, v11")
    e(f"  v_mov_b32 v12, v{VM}")
    e(f"  v_mov_b32 v13, v{VL}")
    e("  ds_write_b64 v11, v[12:13]")
    e("  s_cmp_lg_u32 s20, 0")
    e("  s_cbranch_scc1 L_nard2")
    e("  s_waitcnt vmcnt(0)")
    e("  v_readfirstlane_b32 s46, v104")
    e("  s_and_b32 s46, s46, 0xff")
    if FORCE_ABANDON:
        e("  s_cmp_lg_u32 s59, 1")
    else:
        e("  s_cmp_lg_u32 s46, 4")
    e("  s_cselect_b32 s47, 2, 1")
    e(f"  v_mov_b32 v105, {XLDS}")
    e("  v_mov_b32 v106, s47")
    e("  ds_write_b32 v105, v106")
    e("L_nard2:")
    e("  s_waitcnt lgkmcnt(0)")
    stamp()
    e("  s_barrier")
    stamp()
    e(f"  v_mov_b32 v105, {XLDS}")
    e("  ds_read_b32 v106, v105")
    e("  s_lshl_b32 s43, s20, 11")
    e("  v_add_u32 v9, s43, v8")
    e(f"  v_add_u32 v10, {XLDS+64}, v10")
    e("  s_lshl_b32 s46, s2, 15")
    e("  s_add_u32 s48, s10, s46")
    e("  s_addc_u32 s49, s11, 0")
    e("  s_mov_b32 s50, 32768")
    e("  s_mov_b32 s51, 0x00020000")
    e("  s_lshl_b32 s40, s20, 10               ; w*1024")
    e("  s_waitcnt lgkmcnt(0)")
    e("  v_readfirstlane_b32 s47, v106")
    def rd(j):
        rb = 16 + 16*j; mb = 80 + 4*j
        e(f"  ds_read_b64 v[{mb}:{mb+1}], v10 offset:{j*512}")
        e(f"  ds_read_b64 v[{mb+2}:{mb+3}], v10 offset:{(j+4)*512}")
        e(f"  v_add_u32 v14, {j*16384}, v9")
        e(f"  ds_read_b128 v[{rb}:{rb+3}], v14")
        e(f"  ds_read_b128 v[{rb+4}:{rb+7}], v14 offset:1024")
        e(f"  v_add_u32 v14, {(j+4)*16384}, v9")
        e(f"  ds_read_b128 v[{rb+8}:{rb+11}], v14")
        e(f"  ds_read_b128 v[{rb+12}:{rb+15}], v14 offset:1024")
    rd(0); rd(1)
    for j in range(4):
        rb = 16 + 16*j; mb = 80 + 4*j
        e(f"  s_waitcnt lgkmcnt({6 if j < 3 else 0})")
        if j + 2 < 4: rd(j + 2)
        e(f"  v_max_f32 v100, v{mb}, v{mb+2}")
        e(f"  v_sub_f32 v101, v{mb}, v100")
        e(f"  v_sub_f32 v102, v{mb+2}, v100")
        e("  v_exp_f32 v101, v101")
        e("  v_exp_f32 v102, v102")
        e("  s_nop 0")
        e(f"  v_mul_f32 v103, v101, v{mb+1}")
        e(f"  v_fma_f32 v{mb+1}, v102, v{mb+3}, v103     ; L")
        e(f"  v_mov_b32 v{mb}, v100                       ; M")
        for r in range(8):
            e(f"  v_mul_f32 v{rb+r}, v101, v{rb+r}")
            e(f"  v_fma_f32 v{rb+r}, v102, v{rb+8+r}, v{rb+r}")
        for r in range(4):
            e(f"  v_cvt_pk_bf16_f32 v{rb+8+r}, v{rb+2*r}, v{rb+2*r+1}")
        e(f"  s_cmp_lg_u32 s59, {j}")
        e(f"  s_cbranch_scc1 L_st{j}")
        for r in range(8):
            e(f"  v_mov_b32 v{108+r}, v{rb+r}")
        e(f"  v_mov_b32 v116, v{mb}")
        e(f"  v_mov_b32 v117, v{mb+1}")
        e("  s_cmp_eq_u32 s47, 1")
        e(f"  s_cbranch_scc1 L_nost{j}")
        e(f"L_st{j}:")
        e(f"  s_add_u32 s46, s40, {j*8192}")
        e(f"  buffer_store_dwordx4 v[{rb+8}:{rb+11}], v8, s[48:51], s46 offen {PPOL}")
        e(f"L_nost{j}:")
    e("  s_cmp_lg_u32 s20, 0")
    e("  s_cbranch_scc1 L_noml")
    e("  s_lshl_b32 s46, s2, 10")
    e(f"  s_add_u32 s46, s46, {ML_OFF}")
    e("  s_add_u32 s52, s10, s46")
    e("  s_addc_u32 s53, s11, 0")
    e("  v_lshlrev_b32 v14, 3, v2")
    e("  s_mov_b32 s55, 0x00020000")
    e("  s_mov_b32 s54, 1024")
    e("  v_cmp_gt_u32 vcc, 32, v2")
    e("  s_and_saveexec_b64 s[44:45], vcc")
    for j in range(4):
        mb = 80 + 4*j
        e(f"  buffer_store_dwordx2 v[{mb}:{mb+1}], v14, s[52:55], 0 offen offset:{j*256} {PPOL}")
    e("  s_mov_b64 exec, s[44:45]")
    e("L_noml:")
    stamp()
    e("  s_waitcnt vmcnt(0)")
    stamp()
    e("  s_barrier")
    stamp()
    e("  s_cmp_lg_u32 s20, 0")
    e("  s_cbranch_scc1 L_w_notzero")
    e("  v_mov_b32 v104, s47")
    e("  buffer_store_dword v104, v15, s[16:19], 0 offen sc1")
    e("  s_cmp_eq_u32 s47, 2")
    e("  s_cbranch_scc1 L_w_notzero")
    e("  s_lshl_b32 s24, s58, 9")
    e(f"  s_add_u32 s24, s24, {FLAG_OFF}")
    e("  s_add_u32 s16, s10, s24")
    e("  s_addc_u32 s17, s11, 0")
    e("  s_mov_b32 s18, 512")
    e("  v_lshlrev_b32 v105, 7, v2")
    e("L_poll:")
    e("  buffer_load_dword v104, v105, s[16:19], 0 offen sc1")
    e("  s_waitcnt vmcnt(0)")
    e("  v_readlane_b32 s24, v104, 0")
    e("  v_readlane_b32 s25, v104, 1")
    e("  v_readlane_b32 s26, v104, 2")
    e("  v_readlane_b32 s27, v104, 3")
    e("  s_nop 3")
    e("  s_min_u32 s44, s24, s25")
    e("  s_min_u32 s45, s26, s27")
    e("  s_min_u32 s44, s44, s45")
    e("  s_cmp_eq_u32 s44, 0")
    e("  s_cbranch_scc0 L_polldone")
    e("  s_sleep 1")
    e("  s_branch L_poll")
    e("L_polldone:")
    e("  s_mov_b32 s44, 0")
    e("  s_mov_b32 s45, 0")
    for sp, r in enumerate(("s24", "s25", "s26", "s27")):
        e(f"  s_cmp_eq_u32 {r}, 2")
        e(f"  s_cselect_b32 s46, {1 << sp}, 0")
        e(f"  s_cselect_b32 s42, 0, {1 << sp}")
        e("  s_or_b32 s44, s44, s46")
        e("  s_or_b32 s45, s45, s42")
    e("  s_ff1_i32_b32 s46, s45")
    e("  s_cmp_eq_u32 s46, s59")
    e("  s_cselect_b32 s42, s44, 0")
    e(f"  v_mov_b32 v105, {XLDS+4}")
    e("  v_mov_b32 v106, s42")
    e("  ds_write_b32 v105, v106")
    e("  s_waitcnt lgkmcnt(0)")
    e("L_w_notzero:")
    e("  s_barrier")
    e("  s_cmp_eq_u32 s47, 2")
    e("  s_cbranch_scc1 L_done")
    stamp()
    e("  s_lshl_b32 s46, s58, 17")
    e("  s_add_u32 s48, s10, s46")
    e("  s_addc_u32 s49, s11, 0")
    e("  s_mov_b32 s50, 131072")
    e("  s_lshl_b32 s46, s58, 12")
    e(f"  s_add_u32 s46, s46, {ML_OFF}")
    e("  s_add_u32 s52, s10, s46")
    e("  s_addc_u32 s53, s11, 0")
    e("  s_mov_b32 s54, 4096")
    e("  s_mov_b32 s55, 0x00020000")
    e("  v_and_b32 v20, 31, v2")
    e("  v_lshlrev_b32 v20, 3, v20")
    e("  s_lshl_b32 s44, s59, 8                 ; j*256")
    e("  s_lshl_b32 s45, s59, 13")
    e("  s_add_u32 s45, s45, s40                ; j*8192 + w*1024")
    for k in range(1, 4):
        e(f"  s_add_u32 s46, s59, {k}")
        e("  s_and_b32 s46, s46, 3")
        e("  s_lshl_b32 s24, s46, 10")
        e("  s_add_u32 s24, s24, s44")
        e(f"  buffer_load_dwordx2 v[{22+2*k}:{23+2*k}], v20, s[52:55], s24 offen {LPOL}")
        e("  s_lshl_b32 s24, s46, 15")
        e("  s_add_u32 s24, s24, s45")
        e(f"  buffer_load_dwordx4 v[{28+4*k}:{31+4*k}], v8, s[48:51], s24 offen {LPOL}")
    e(f"  v_mov_b32 v105, {XLDS+4}")
    e("  ds_read_b32 v106, v105")
    e("  v_lshrrev_b32 v6, 5, v2")
    e("  v_and_b32 v7, 31, v2")
    e("  v_lshlrev_b32 v7, 8, v7")
    e("  v_lshl_add_u32 v7, v6, 4, v7")
    e("  s_lshl_b32 s46, s20, 5")
    e("  v_add_u32 v7, s46, v7")
    e("  s_mov_b32 s61, 0xffff0000")
    e("  s_waitcnt lgkmcnt(0)")
    e("  v_readfirstlane_b32 s42, v106")
    def fin(ms, ls, first_fp32, srcs, jreg):
        e(f"  v_max_f32 v16, v{ms[0]}, v{ms[1]}")
        e(f"  v_max3_f32 v16, v16, v{ms[2]}, v{ms[3]}")
        for m in ms: e(f"  v_sub_f32 v{m}, v{m}, v16")
        for m in ms: e(f"  v_exp_f32 v{m}, v{m}")
        e("  s_nop 0")
        e(f"  v_mul_f32 v17, v{ms[0]}, v{ls[0]}")
        for i in range(1, 4): e(f"  v_fma_f32 v17, v{ms[i]}, v{ls[i]}, v17")
        e("  v_rcp_f32 v17, v17")
        e("  s_nop 0")
        for m in ms: e(f"  v_mul_f32 v{m}, v{m}, v17")
        if first_fp32:
            for r in range(8): e(f"  v_mul_f32 v{108+r}, v{ms[0]}, v{108+r}")
        for idx, (mi, src) in enumerate(srcs):
            for d in range(4):
                e(f"  v_lshlrev_b32 v18, 16, v{src+d}")
                e(f"  v_and_b32 v19, s61, v{src+d}")
                if idx == 0 and not first_fp32:
                    e(f"  v_mul_f32 v{108+2*d}, v{mi}, v18")
                    e(f"  v_mul_f32 v{109+2*d}, v{mi}, v19")
                else:
                    e(f"  v_fma_f32 v{108+2*d}, v{mi}, v18, v{108+2*d}")
                    e(f"  v_fma_f32 v{109+2*d}, v{mi}, v19, v{109+2*d}")
        for jj in range(4):
            e(f"  v_cvt_pk_bf16_f32 v{64+jj}, v{108+2*jj}, v{109+2*jj}")
        e("  s_nop 1")
        e("  v_permlane32_swap_b32 v64, v66")
        e("  v_permlane32_swap_b32 v65, v67")
        e("  s_lshl_b32 s46, s58, 2")
        e(f"  s_add_u32 s46, s46, {jreg}")
        e("  s_lshl_b32 s46, s46, 13")
        e("  s_add_u32 s28, s12, s46")
        e("  s_addc_u32 s29, s13, 0")
        e("  s_mov_b32 s30, 8192")
        e("  s_mov_b32 s31, 0x00020000")
        e("  buffer_store_dwordx4 v[64:67], v7, s[28:31], 0 offen")
    e("  s_waitcnt vmcnt(0)")
    fin([116, 24, 26, 28], [117, 25, 27, 29], True, [(24, 32), (26, 36), (28, 40)], "s59")
    e("L_finloop:")
    e("  s_cmp_eq_u32 s42, 0")
    e("  s_cbranch_scc1 L_finend")
    e("  s_ff1_i32_b32 s44, s42                ; j")
    e("  s_lshl_b32 s45, 1, s44")
    e("  s_andn2_b32 s42, s42, s45")
    e("  s_lshl_b32 s45, s44, 8")
    for sp in range(4):
        e(f"  buffer_load_dwordx2 v[{24+2*sp}:{25+2*sp}], v20, s[52:55], s45 offen offset:{1024*sp} {LPOL}")
    e("  s_lshl_b32 s45, s44, 13")
    e("  s_add_u32 s45, s45, s40")
    for sp in range(4):
        e(f"  buffer_load_dwordx4 v[{32+4*sp}:{35+4*sp}], v8, s[48:51], s45 offen {LPOL}")
        if sp < 3: e("  s_add_u32 s45, s45, 32768")
    e("  s_waitcnt vmcnt(0)")
    fin([24, 26, 28, 30], [25, 27, 29, 31], False, [(24, 32), (26, 36), (28, 40), (30, 44)], "s44")
    e("  s_branch L_finloop")
    e("L_finend:")
    if STAMP:
        e("  s_waitcnt vmcnt(0)")
        stamp()
        e("  s_waitcnt lgkmcnt(0)")
        e("  s_lshl_b32 s46, s2, 3")
        e("  s_add_u32 s46, s46, s20")
        e("  s_lshl_b32 s46, s46, 8")
        e("  s_add_u32 s46, s46, 0x2000000")
        e("  s_add_u32 s48, s10, s46")
        e("  s_addc_u32 s49, s11, 0")
        e("  s_mov_b32 s50, 256")
        e("  s_mov_b32 s51, 0x00020000")
        e("  v_mov_b32 v3, 0")
        for i_ in range(nstamp[0]):
            e(f"  v_mov_b32 v4, s{66+2*i_}")
            e(f"  v_mov_b32 v5, s{67+2*i_}")
            e(f"  buffer_store_dwordx2 v[4:5], v3, s[48:51], 0 offen offset:{8*i_}")
    e("L_done:")
    e("  s_endpgm")

e(HEADER.rstrip())
e(f"; @launch grid=(256,1,1) block=(512,1,1) lds={XLDS+64+4096}")
e('.amdgcn_target "amdgcn-amd-amdhsa--gfx950"')
e(".text")
kernel()
e('.section .rodata,"a"')
e(".p2align 6")
e(f".amdhsa_kernel {NAME}")
e("  .amdhsa_next_free_vgpr 256")
e(f"  .amdhsa_next_free_sgpr {102 if STAMP else 72}")
e("  .amdhsa_accum_offset 256")
e("  .amdhsa_group_segment_fixed_size 0")
e("  .amdhsa_kernarg_size 48")
e("  .amdhsa_user_sgpr_count 2")
e("  .amdhsa_user_sgpr_kernarg_segment_ptr 1")
e("  .amdhsa_system_sgpr_workgroup_id_x 1")
e(".end_amdhsa_kernel")
open(sys.argv[1] if len(sys.argv) > 1 else "standalone__gqa_softmax__sampling.s", "w").write("\n".join(out) + "\n")
```

```python
import sys, os
POL = os.environ.get("POL", "nt")
PPOL = os.environ.get("PPOL", "sc1")
LPOL = os.environ.get("LPOL", "sc1")
STAMP = int(os.environ.get("STAMP", "0"))
DIAG = int(os.environ.get("DIAG", "0"))
PRIO = int(os.environ.get("PRIO", "1"))
FORCE_ABANDON = int(os.environ.get("FORCE_ABANDON", "0"))
nstamp = [0]
def stamp():
    if STAMP:
        i = nstamp[0]; nstamp[0] += 1
        e(f"  s_memtime s[{60+6+2*i}:{60+7+2*i}]")

HEADER = """; Kernarg layout for this problem (48 bytes, ptrs only, base s[0:1]):
"""
out = []
def e(s=""):
    out.append(s)

Q0 = 16; KF = 48; VF = 80; SA = 112; SB = 128; P0 = 144; O0 = 160
KA = 224; VA = 232; DK0, DK1, DV = 236, 237, 238
VM, VL = 239, 240
T0 = 241
ML_OFF = 16 * 1024 * 1024
FLAG_OFF = 17 * 1024 * 1024
XLDS = 131072
NAME = "standalone__gqa_softmax__sampling_kernel"

def dma_k(t):
    e(f"  s_add_u32 s38, s37, {(t&3)*16384}")
    e("  s_mov_b32 m0, s38")
    e(f"  s_mov_b32 s39, {t*16384}")
    e(f"  buffer_load_dwordx4 v{DK0}, s[28:31], s39 offen {POL} lds")
    e(f"  buffer_load_dwordx4 v{DK1}, s[28:31], s39 offen offset:1024 {POL} lds")
def dma_v(t):
    e(f"  s_add_u32 s38, s37, {65536+(t&3)*16384}")
    e("  s_mov_b32 m0, s38")
    e(f"  s_mov_b32 s39, {t*16384}")
    e(f"  buffer_load_dwordx4 v{DV}, s[32:35], s39 offen {POL} lds")
    e(f"  buffer_load_dwordx4 v{DV}, s[32:35], s39 offen offset:1024 {POL} lds")

WAITS = {0: 6, 6: 6, 7: 4, 8: 2, 9: 0}
def top(i):
    n = WAITS.get(i, 8)
    e(f"  ; ---- interval {i} ----")
    e(f"  s_waitcnt vmcnt({n})")
    e("  s_barrier")
    if i in (0, 1, 9): stamp()
    if i + 3 <= 7: dma_k(i + 3)
    if i + 1 <= 7: dma_v(i + 1)

def vread1(slot, s, idx):
    t, ee = idx >> 1, idx & 1
    bb = VF + (s & 1)*16 + t*4 + 2*ee
    e(f"  ds_read_b64_tr_b16 v[{bb}:{bb+1}], v{VA+t} offset:{slot+(16*s+8*ee)*256}")
def vreads(slot, s):
    for idx in range(8): vread1(slot, s, idx)
def pvm(s):
    for t in range(4):
        bb = VF + (s & 1)*16 + t*4
        e(f"  v_mfma_f32_32x32x16_bf16 v[{O0+16*t}:{O0+16*t+15}], v[{bb}:{bb+3}], v[{P0+4*s}:{P0+4*s+3}], v[{O0+16*t}:{O0+16*t+15}]")

def mfma_phase(tk, tv):
    if PRIO: e("  s_setprio 1")
    vs = None if tv is None else (tv & 3) * 16384
    if tk is not None:
        slot = (tk & 3) * 16384
        for st in range(8):
            e(f"  ds_read_b128 v[{KF+4*st}:{KF+4*st+3}], v{KA+st} offset:{slot}")
        for st in range(8):
            e("  s_waitcnt lgkmcnt(7)")
            c = "0" if st == 0 else f"v[{SA}:{SA+15}]"
            e(f"  v_mfma_f32_32x32x16_bf16 v[{SA}:{SA+15}], v[{KF+4*st}:{KF+4*st+3}], v[{Q0+4*st}:{Q0+4*st+3}], {c}")
            e(f"  ds_read_b128 v[{KF+4*st}:{KF+4*st+3}], v{KA+st} offset:{slot+8192}")
        for st in range(8):
            if tv is not None:
                e(f"  s_waitcnt lgkmcnt({min(7+st, 13)})" if st < 7 else "  s_waitcnt lgkmcnt(13)")
            else:
                e(f"  s_waitcnt lgkmcnt({7-st})")
            c = "0" if st == 0 else f"v[{SB}:{SB+15}]"
            e(f"  v_mfma_f32_32x32x16_bf16 v[{SB}:{SB+15}], v[{KF+4*st}:{KF+4*st+3}], v[{Q0+4*st}:{Q0+4*st+3}], {c}")
            if tv is not None:
                vread1(vs, st >> 2, 2*(st & 3)); vread1(vs, st >> 2, 2*(st & 3) + 1)
    elif tv is not None:
        vreads(vs, 0); vreads(vs, 1)
    if tv is not None:
        e("  s_waitcnt lgkmcnt(8)"); pvm(0)
        vreads(vs, 2)
        e("  s_waitcnt lgkmcnt(8)"); pvm(1)
        vreads(vs, 3)
        e("  s_waitcnt lgkmcnt(8)"); pvm(2)
        e("  s_waitcnt lgkmcnt(0)"); pvm(3)
    if PRIO: e("  s_setprio 0")

def valu_phase(lab):
    a = lambda i: f"v{SA+i}"
    b = lambda i: f"v{SB+i}"
    t_ = lambda i: f"v{T0+i}"
    e(f"  v_max3_f32 {t_(0)}, {a(0)}, {a(1)}, {a(2)}")
    e(f"  v_max3_f32 {t_(1)}, {a(3)}, {a(4)}, {a(5)}")
    e(f"  v_max3_f32 {t_(2)}, {a(6)}, {a(7)}, {a(8)}")
    e(f"  v_max3_f32 {t_(3)}, {a(9)}, {a(10)}, {a(11)}")
    e(f"  v_max3_f32 {t_(4)}, {a(12)}, {a(13)}, {a(14)}")
    e(f"  v_max3_f32 {t_(0)}, {t_(0)}, {t_(1)}, {a(15)}")
    e(f"  v_max3_f32 {t_(2)}, {t_(2)}, {t_(3)}, {t_(4)}")
    e(f"  v_max3_f32 {t_(1)}, {b(0)}, {b(1)}, {b(2)}")
    e(f"  v_max3_f32 {t_(3)}, {b(3)}, {b(4)}, {b(5)}")
    e(f"  v_max3_f32 {t_(4)}, {b(6)}, {b(7)}, {b(8)}")
    e(f"  v_max3_f32 {t_(5)}, {b(9)}, {b(10)}, {b(11)}")
    e(f"  v_max3_f32 {t_(6)}, {b(12)}, {b(13)}, {b(14)}")
    e(f"  v_max3_f32 {t_(0)}, {t_(0)}, {t_(2)}, {b(15)}")
    e(f"  v_max3_f32 {t_(1)}, {t_(1)}, {t_(3)}, {t_(4)}")
    e(f"  v_max3_f32 {t_(0)}, {t_(0)}, {t_(5)}, {t_(6)}")
    e(f"  v_max_f32 {t_(0)}, {t_(0)}, {t_(1)}")
    e(f"  v_mov_b32 {t_(1)}, {t_(0)}")
    e(f"  v_add_f32 {t_(2)}, s57, v{VM}")
    e("  s_nop 0")
    e(f"  v_permlane32_swap_b32 {t_(0)}, {t_(1)}")
    e(f"  v_max_f32 {t_(0)}, {t_(0)}, {t_(1)}")
    e(f"  v_mul_f32 {t_(0)}, s41, {t_(0)}")
    e(f"  v_cmp_gt_f32 vcc, {t_(0)}, {t_(2)}")
    e("  s_nop 1")
    e(f"  s_cbranch_vccz L_skip_{lab}")
    e(f"  v_max_f32 {t_(0)}, v{VM}, {t_(0)}")
    e(f"  v_sub_f32 {t_(1)}, v{VM}, {t_(0)}")
    e(f"  v_exp_f32 {t_(1)}, {t_(1)}")
    e(f"  v_mov_b32 v{VM}, {t_(0)}")
    for r in range(64):
        e(f"  v_mul_f32 v{O0+r}, {t_(1)}, v{O0+r}")
    e(f"  v_mul_f32 v{VL}, {t_(1)}, v{VL}")
    e(f"L_skip_{lab}:")
    for i in range(16):
        e(f"  v_fma_f32 {a(i)}, {a(i)}, s41, -v{VM}")
    for i in range(16):
        e(f"  v_exp_f32 {a(i)}, {a(i)}")
    for i in range(16):
        e(f"  v_fma_f32 {b(i)}, {b(i)}, s41, -v{VM}")
    for i in range(16):
        e(f"  v_exp_f32 {b(i)}, {b(i)}")
        if i % 2 == 1:
            j = i - 1
            e(f"  v_add_f32 {t_(j%4)}, {a(j)}, {a(j+1)}")
            e(f"  v_cvt_pk_bf16_f32 v{P0+j//2}, {a(j)}, {a(j+1)}")
            e(f"  v_add_f32 v{VL}, v{VL}, {t_(j%4)}")
    for i in range(0, 16, 2):
        e(f"  v_add_f32 {t_(i%4)}, {b(i)}, {b(i+1)}")
        e(f"  v_cvt_pk_bf16_f32 v{P0+8+i//2}, {b(i)}, {b(i+1)}")
        e(f"  v_add_f32 v{VL}, v{VL}, {t_(i%4)}")

def kernel():
    e(f".globl {NAME}")
    e(".p2align 8")
    e(f".type {NAME},@function")
    e(f"{NAME}:")
    e("  s_cmp_ge_u32 s2, 256")
    e("  s_cbranch_scc1 L_done")
    if DIAG:
        e("  s_memtime s[90:91]")
        e("  s_memrealtime s[92:93]")
    e("  s_load_dwordx4 s[4:7], s[0:1], 0      ; q, k")
    e("  s_load_dwordx2 s[8:9], s[0:1], 16     ; v")
    e("  s_load_dwordx4 s[12:15], s[0:1], 24")
    e("  s_load_dwordx2 s[10:11], s[0:1], 40   ; ws")
    e("  v_lshrrev_b32 v1, 6, v0")
    e("  v_and_b32 v2, 63, v0                  ; lane")
    e("  v_readfirstlane_b32 s20, v1")
    e("  s_nop 3")
    e("  s_and_b32 s21, s20, 3                 ; q tile")
    e("  s_lshr_b32 s22, s20, 2                ; group")
    e("  s_lshr_b32 s58, s2, 2                 ; g")
    e("  s_and_b32 s59, s2, 3                  ; split")
    e("  v_and_b32 v3, 31, v2                  ; l&31")
    e("  v_lshrrev_b32 v4, 5, v2               ; h")
    e("  v_and_b32 v5, 15, v2                  ; i = l&15")
    e("  v_lshrrev_b32 v6, 4, v2               ; g = l>>4")
    e("  s_lshl_b32 s36, s20, 3")
    e("  v_add_u32 v8, s36, v6")
    e("  v_and_b32 v9, 15, v8")
    e("  v_xor_b32 v9, v9, v5")
    e(f"  v_lshlrev_b32 v{DK0}, 8, v8")
    e(f"  v_lshl_add_u32 v{DK0}, v9, 4, v{DK0}")
    e("  v_add_u32 v10, 4, v8")
    e("  v_and_b32 v9, 15, v10")
    e("  v_xor_b32 v9, v9, v5")
    e(f"  v_lshlrev_b32 v{DK1}, 8, v10")
    e(f"  v_lshl_add_u32 v{DK1}, v9, 4, v{DK1}")
    e(f"  v_subrev_u32 v{DK1}, 1024, v{DK1}")
    e("  v_lshlrev_b32 v9, 2, v6")
    e("  v_xor_b32 v9, v9, v5")
    e(f"  v_lshlrev_b32 v{DV}, 8, v8")
    e(f"  v_lshl_add_u32 v{DV}, v9, 4, v{DV}")
    e("  s_lshl_b32 s37, s20, 11")
    e("  s_lshl_b32 s23, s2, 17")
    e("  s_waitcnt lgkmcnt(0)")
    e("  s_lshr_b32 s24, s58, 2")
    e("  s_lshl_b32 s24, s24, 2")
    e("  s_add_u32 s24, s24, 192")
    e("  s_and_b32 s65, s58, 3")
    e("  s_lshl_b32 s65, s65, 3")
    e("  s_add_u32 s60, s14, s24")
    e("  s_addc_u32 s61, s15, 0")
    e("  s_mov_b32 s62, 4")
    e("  s_mov_b32 s63, 0x00020000")
    e("  v_lshlrev_b32 v15, 2, v2")
    e("  s_cmp_lg_u32 s20, 0")
    e("  s_cbranch_scc1 L_noarrive")
    e("  s_lshl_b32 s24, s2, 7")
    e(f"  s_add_u32 s24, s24, {FLAG_OFF}")
    e("  s_add_u32 s16, s10, s24")
    e("  s_addc_u32 s17, s11, 0")
    e("  s_mov_b32 s18, 4")
    e("  s_mov_b32 s19, 0x00020000")
    e("  v_mov_b32 v14, 0")
    e("  buffer_store_dword v14, v15, s[16:19], 0 offen sc1")
    e("L_noarrive:")
    e("  s_add_u32 s28, s6, s23")
    e("  s_addc_u32 s29, s7, 0")
    e("  s_mov_b32 s30, 131072")
    e("  s_mov_b32 s31, 0x00020000")
    dma_k(0)
    e("  s_add_u32 s32, s8, s23")
    e("  s_addc_u32 s33, s9, 0")
    e("  s_mov_b32 s34, 131072")
    e("  s_mov_b32 s35, 0x00020000")
    e("  s_lshl_b32 s23, s58, 2")
    e("  s_add_u32 s23, s23, s21")
    e("  s_lshl_b32 s23, s23, 13")
    e("  s_add_u32 s24, s4, s23")
    e("  s_addc_u32 s25, s5, 0")
    e("  s_mov_b32 s26, 8192")
    e("  s_mov_b32 s27, 0x00020000")
    e("  v_lshlrev_b32 v7, 8, v3")
    e("  v_lshl_add_u32 v7, v4, 4, v7")
    for st in range(8):
        e(f"  buffer_load_dwordx4 v[{Q0+4*st}:{Q0+4*st+3}], v7, s[24:27], 0 offen offset:{32*st}")
    dma_k(1); dma_v(0); dma_k(2)
    e("  v_lshlrev_b32 v8, 8, v3")
    for st in range(8):
        e(f"  v_add_u32 v9, {2*st}, v4")
        e("  v_xor_b32 v9, v9, v5")
        e(f"  v_lshl_add_u32 v{KA+st}, v9, 4, v8")
    e("  v_lshrrev_b32 v9, 2, v5")
    e("  v_lshl_add_u32 v10, v4, 2, v9")
    e("  v_lshlrev_b32 v10, 8, v10")
    e("  v_add_u32 v10, 0x10000, v10")
    e("  v_and_b32 v11, 1, v6")
    e("  v_lshl_add_u32 v10, v11, 5, v10")
    e("  v_and_b32 v11, 3, v5")
    e("  v_lshl_add_u32 v10, v11, 3, v10")
    for t in range(4):
        e(f"  v_xor_b32 v11, {t}, v9")
        e(f"  v_lshl_add_u32 v{VA+t}, v11, 6, v10")
    for r in range(64):
        e(f"  v_mov_b32 v{O0+r}, 0")
    e(f"  v_mov_b32 v{VM}, 0xff800000")
    e(f"  v_mov_b32 v{VL}, 0")
    e("  s_mov_b32 s41, 0x3e0293ee")
    e("  s_mov_b32 s57, 0x41000000             ; T = 8")
    stamp()
    e("  s_cmp_ge_u32 s22, 1")
    e("  s_cbranch_scc1 L_groupB")
    e("  ; ---- interval 0 (A) ----")
    e("  s_waitcnt vmcnt(6)")
    e("  s_cmp_lg_u32 s20, 0")
    e("  s_cbranch_scc1 L_noarr2")
    e("  s_lshl_b32 s24, 1, s65")
    e("  v_mov_b32 v14, s24")
    e("  buffer_atomic_add v14, v15, s[60:63], 0 offen sc1")
    e("L_noarr2:")
    e("  s_barrier")
    stamp()
    dma_k(3); dma_v(1)
    mfma_phase(0, None)
    for j in range(4):
        top(2*j+1); valu_phase(f"a{j}")
        top(2*j+2); mfma_phase(2*j+2 if j < 3 else None, 2*j)
    top(9)
    e("  s_branch L_epi")
    e("L_groupB:")
    nstamp[0] = 1
    top(0)
    top(1); mfma_phase(1, None)
    for j in range(4):
        top(2*j+2); valu_phase(f"b{j}")
        top(2*j+3); mfma_phase(2*j+3 if j < 3 else None, 2*j+1)
    e("L_epi:")
    stamp()
    t_ = lambda i: f"v{T0+i}"
    e("  s_cmp_lg_u32 s20, 0")
    e("  s_cbranch_scc1 L_nard")
    e("  buffer_load_dword v104, v15, s[60:63], 0 offen sc1")
    e("L_nard:")
    e(f"  v_mov_b32 {t_(1)}, v{VL}")
    e("  s_nop 7")
    e("  s_nop 7")
    e(f"  v_permlane32_swap_b32 v{VL}, {t_(1)}")
    e(f"  v_add_f32 v{VL}, v{VL}, {t_(1)}")
    e("  s_barrier")
    stamp()
    e("  s_lshl_b32 s43, s20, 14")
    e("  v_lshlrev_b32 v8, 4, v2")
    e("  v_add_u32 v9, s43, v8")
    for qd in range(16):
        e(f"  ds_write_b128 v9, v[{O0+4*qd}:{O0+4*qd+3}] offset:{1024*qd}")
    e("  s_lshl_b32 s43, s20, 9")
    e("  v_lshlrev_b32 v10, 3, v2")
    e("  v_add_u32 v11, s43, v10")
    e(f"  v_add_u32 v11, {XLDS+64}, v11")
    e(f"  v_mov_b32 v12, v{VM}")
    e(f"  v_mov_b32 v13, v{VL}")
    e("  ds_write_b64 v11, v[12:13]")
    e("  s_cmp_lg_u32 s20, 0")
    e("  s_cbranch_scc1 L_nard2")
    e("  s_waitcnt vmcnt(0)")
    e("  v_readfirstlane_b32 s46, v104")
    e("  s_nop 3")
    e("  s_lshr_b32 s46, s46, s65")
    e("  s_and_b32 s46, s46, 0xff")
    if FORCE_ABANDON:
        e("  s_cmp_lg_u32 s59, 1")
    else:
        e("  s_cmp_lg_u32 s46, 4")
    e("  s_cselect_b32 s47, 2, 1")
    e(f"  v_mov_b32 v105, {XLDS}")
    e("  v_mov_b32 v106, s47")
    e("  ds_write_b32 v105, v106")
    e("L_nard2:")
    e("  s_waitcnt lgkmcnt(0)")
    stamp()
    e("  s_barrier")
    stamp()
    e(f"  v_mov_b32 v105, {XLDS}")
    e("  ds_read_b32 v106, v105")
    e("  s_lshl_b32 s43, s20, 11")
    e("  v_add_u32 v9, s43, v8")
    e(f"  v_add_u32 v10, {XLDS+64}, v10")
    e("  s_lshl_b32 s46, s2, 15")
    e("  s_add_u32 s48, s10, s46")
    e("  s_addc_u32 s49, s11, 0")
    e("  s_mov_b32 s50, 32768")
    e("  s_mov_b32 s51, 0x00020000")
    e("  s_lshl_b32 s40, s20, 10               ; w*1024")
    e("  s_waitcnt lgkmcnt(0)")
    e("  v_readfirstlane_b32 s47, v106")
    def rd(j):
        rb = 16 + 16*j; mb = 80 + 4*j
        e(f"  ds_read_b64 v[{mb}:{mb+1}], v10 offset:{j*512}")
        e(f"  ds_read_b64 v[{mb+2}:{mb+3}], v10 offset:{(j+4)*512}")
        e(f"  v_add_u32 v14, {j*16384}, v9")
        e(f"  ds_read_b128 v[{rb}:{rb+3}], v14")
        e(f"  ds_read_b128 v[{rb+4}:{rb+7}], v14 offset:1024")
        e(f"  v_add_u32 v14, {(j+4)*16384}, v9")
        e(f"  ds_read_b128 v[{rb+8}:{rb+11}], v14")
        e(f"  ds_read_b128 v[{rb+12}:{rb+15}], v14 offset:1024")
    rd(0); rd(1)
    for j in range(4):
        rb = 16 + 16*j; mb = 80 + 4*j
        e(f"  s_waitcnt lgkmcnt({6 if j < 3 else 0})")
        if j + 2 < 4: rd(j + 2)
        e(f"  v_max_f32 v100, v{mb}, v{mb+2}")
        e(f"  v_sub_f32 v101, v{mb}, v100")
        e(f"  v_sub_f32 v102, v{mb+2}, v100")
        e("  v_exp_f32 v101, v101")
        e("  v_exp_f32 v102, v102")
        e("  s_nop 0")
        e(f"  v_mul_f32 v103, v101, v{mb+1}")
        e(f"  v_fma_f32 v{mb+1}, v102, v{mb+3}, v103     ; L")
        e(f"  v_mov_b32 v{mb}, v100                       ; M")
        for r in range(8):
            e(f"  v_mul_f32 v{rb+r}, v101, v{rb+r}")
            e(f"  v_fma_f32 v{rb+r}, v102, v{rb+8+r}, v{rb+r}")
        for r in range(4):
            e(f"  v_cvt_pk_bf16_f32 v{rb+8+r}, v{rb+2*r}, v{rb+2*r+1}")
        e(f"  s_cmp_lg_u32 s59, {j}")
        e(f"  s_cbranch_scc1 L_st{j}")
        for r in range(8):
            e(f"  v_mov_b32 v{108+r}, v{rb+r}")
        e(f"  v_mov_b32 v116, v{mb}")
        e(f"  v_mov_b32 v117, v{mb+1}")
        e("  s_cmp_eq_u32 s47, 1")
        e(f"  s_cbranch_scc1 L_nost{j}")
        e(f"L_st{j}:")
        e(f"  s_add_u32 s46, s40, {j*8192}")
        e(f"  buffer_store_dwordx4 v[{rb+8}:{rb+11}], v8, s[48:51], s46 offen {PPOL}")
        e(f"L_nost{j}:")
    e("  s_cmp_lg_u32 s20, 0")
    e("  s_cbranch_scc1 L_noml")
    e("  s_lshl_b32 s46, s2, 10")
    e(f"  s_add_u32 s46, s46, {ML_OFF}")
    e("  s_add_u32 s52, s10, s46")
    e("  s_addc_u32 s53, s11, 0")
    e("  v_lshlrev_b32 v14, 3, v2")
    e("  s_mov_b32 s55, 0x00020000")
    e("  s_mov_b32 s54, 1024")
    e("  v_cmp_gt_u32 vcc, 32, v2")
    e("  s_and_saveexec_b64 s[44:45], vcc")
    for j in range(4):
        mb = 80 + 4*j
        e(f"  buffer_store_dwordx2 v[{mb}:{mb+1}], v14, s[52:55], 0 offen offset:{j*256} {PPOL}")
    e("  s_mov_b64 exec, s[44:45]")
    e("L_noml:")
    stamp()
    e("  s_waitcnt vmcnt(0)")
    stamp()
    e("  s_barrier")
    stamp()
    e("  s_cmp_lg_u32 s20, 0")
    e("  s_cbranch_scc1 L_w_notzero")
    e("  v_mov_b32 v104, s47")
    e("  buffer_store_dword v104, v15, s[16:19], 0 offen sc1")
    e("  s_cmp_eq_u32 s47, 2")
    e("  s_cbranch_scc1 L_w_notzero")
    e("  s_lshl_b32 s24, s58, 9")
    e(f"  s_add_u32 s24, s24, {FLAG_OFF}")
    e("  s_add_u32 s16, s10, s24")
    e("  s_addc_u32 s17, s11, 0")
    e("  s_mov_b32 s18, 512")
    e("  v_lshlrev_b32 v105, 7, v2")
    e("L_poll:")
    e("  buffer_load_dword v104, v105, s[16:19], 0 offen sc1")
    e("  s_waitcnt vmcnt(0)")
    e("  v_readlane_b32 s24, v104, 0")
    e("  v_readlane_b32 s25, v104, 1")
    e("  v_readlane_b32 s26, v104, 2")
    e("  v_readlane_b32 s27, v104, 3")
    e("  s_nop 3")
    e("  s_min_u32 s44, s24, s25")
    e("  s_min_u32 s45, s26, s27")
    e("  s_min_u32 s44, s44, s45")
    e("  s_cmp_eq_u32 s44, 0")
    e("  s_cbranch_scc0 L_polldone")
    e("  s_sleep 1")
    e("  s_branch L_poll")
    e("L_polldone:")
    e("  s_mov_b32 s44, 0")
    e("  s_mov_b32 s45, 0")
    for sp, r in enumerate(("s24", "s25", "s26", "s27")):
        e(f"  s_cmp_eq_u32 {r}, 2")
        e(f"  s_cselect_b32 s46, {1 << sp}, 0")
        e(f"  s_cselect_b32 s42, 0, {1 << sp}")
        e("  s_or_b32 s44, s44, s46")
        e("  s_or_b32 s45, s45, s42")
    e("  s_ff1_i32_b32 s46, s45")
    e("  s_cmp_eq_u32 s46, s59")
    e("  s_cselect_b32 s42, s44, 0")
    e(f"  v_mov_b32 v105, {XLDS+4}")
    e("  v_mov_b32 v106, s42")
    e("  ds_write_b32 v105, v106")
    e("  s_waitcnt lgkmcnt(0)")
    e("L_w_notzero:")
    e("  s_barrier")
    e("  s_cmp_eq_u32 s47, 2")
    e("  s_cbranch_scc1 L_done")
    stamp()
    e("  s_lshl_b32 s46, s58, 17")
    e("  s_add_u32 s48, s10, s46")
    e("  s_addc_u32 s49, s11, 0")
    e("  s_mov_b32 s50, 131072")
    e("  s_lshl_b32 s46, s58, 12")
    e(f"  s_add_u32 s46, s46, {ML_OFF}")
    e("  s_add_u32 s52, s10, s46")
    e("  s_addc_u32 s53, s11, 0")
    e("  s_mov_b32 s54, 4096")
    e("  s_mov_b32 s55, 0x00020000")
    e("  v_and_b32 v20, 31, v2")
    e("  v_lshlrev_b32 v20, 3, v20")
    e("  s_lshl_b32 s44, s59, 8                 ; j*256")
    e("  s_lshl_b32 s45, s59, 13")
    e("  s_add_u32 s45, s45, s40                ; j*8192 + w*1024")
    for k in range(1, 4):
        e(f"  s_add_u32 s46, s59, {k}")
        e("  s_and_b32 s46, s46, 3")
        e("  s_lshl_b32 s24, s46, 10")
        e("  s_add_u32 s24, s24, s44")
        e(f"  buffer_load_dwordx2 v[{22+2*k}:{23+2*k}], v20, s[52:55], s24 offen {LPOL}")
        e("  s_lshl_b32 s24, s46, 15")
        e("  s_add_u32 s24, s24, s45")
        e(f"  buffer_load_dwordx4 v[{28+4*k}:{31+4*k}], v8, s[48:51], s24 offen {LPOL}")
    e(f"  v_mov_b32 v105, {XLDS+4}")
    e("  ds_read_b32 v106, v105")
    e("  v_lshrrev_b32 v6, 5, v2")
    e("  v_and_b32 v7, 31, v2")
    e("  v_lshlrev_b32 v7, 8, v7")
    e("  v_lshl_add_u32 v7, v6, 4, v7")
    e("  s_lshl_b32 s46, s20, 5")
    e("  v_add_u32 v7, s46, v7")
    e("  s_mov_b32 s61, 0xffff0000")
    e("  s_waitcnt lgkmcnt(0)")
    e("  v_readfirstlane_b32 s42, v106")
    def fin(ms, ls, first_fp32, srcs, jreg):
        e(f"  v_max_f32 v16, v{ms[0]}, v{ms[1]}")
        e(f"  v_max3_f32 v16, v16, v{ms[2]}, v{ms[3]}")
        for m in ms: e(f"  v_sub_f32 v{m}, v{m}, v16")
        for m in ms: e(f"  v_exp_f32 v{m}, v{m}")
        e("  s_nop 0")
        e(f"  v_mul_f32 v17, v{ms[0]}, v{ls[0]}")
        for i in range(1, 4): e(f"  v_fma_f32 v17, v{ms[i]}, v{ls[i]}, v17")
        e("  v_rcp_f32 v17, v17")
        e("  s_nop 0")
        for m in ms: e(f"  v_mul_f32 v{m}, v{m}, v17")
        if first_fp32:
            for r in range(8): e(f"  v_mul_f32 v{108+r}, v{ms[0]}, v{108+r}")
        for idx, (mi, src) in enumerate(srcs):
            for d in range(4):
                e(f"  v_lshlrev_b32 v18, 16, v{src+d}")
                e(f"  v_and_b32 v19, s61, v{src+d}")
                if idx == 0 and not first_fp32:
                    e(f"  v_mul_f32 v{108+2*d}, v{mi}, v18")
                    e(f"  v_mul_f32 v{109+2*d}, v{mi}, v19")
                else:
                    e(f"  v_fma_f32 v{108+2*d}, v{mi}, v18, v{108+2*d}")
                    e(f"  v_fma_f32 v{109+2*d}, v{mi}, v19, v{109+2*d}")
        for jj in range(4):
            e(f"  v_cvt_pk_bf16_f32 v{64+jj}, v{108+2*jj}, v{109+2*jj}")
        e("  s_nop 1")
        e("  v_permlane32_swap_b32 v64, v66")
        e("  v_permlane32_swap_b32 v65, v67")
        e("  s_lshl_b32 s46, s58, 2")
        e(f"  s_add_u32 s46, s46, {jreg}")
        e("  s_lshl_b32 s46, s46, 13")
        e("  s_add_u32 s28, s12, s46")
        e("  s_addc_u32 s29, s13, 0")
        e("  s_mov_b32 s30, 8192")
        e("  s_mov_b32 s31, 0x00020000")
        e("  buffer_store_dwordx4 v[64:67], v7, s[28:31], 0 offen")
    e("  s_waitcnt vmcnt(0)")
    fin([116, 24, 26, 28], [117, 25, 27, 29], True, [(24, 32), (26, 36), (28, 40)], "s59")
    e("L_finloop:")
    e("  s_cmp_eq_u32 s42, 0")
    e("  s_cbranch_scc1 L_finend")
    e("  s_ff1_i32_b32 s44, s42                ; j")
    e("  s_lshl_b32 s45, 1, s44")
    e("  s_andn2_b32 s42, s42, s45")
    e("  s_lshl_b32 s45, s44, 8")
    for sp in range(4):
        e(f"  buffer_load_dwordx2 v[{24+2*sp}:{25+2*sp}], v20, s[52:55], s45 offen offset:{1024*sp} {LPOL}")
    e("  s_lshl_b32 s45, s44, 13")
    e("  s_add_u32 s45, s45, s40")
    for sp in range(4):
        e(f"  buffer_load_dwordx4 v[{32+4*sp}:{35+4*sp}], v8, s[48:51], s45 offen {LPOL}")
        if sp < 3: e("  s_add_u32 s45, s45, 32768")
    e("  s_waitcnt vmcnt(0)")
    fin([24, 26, 28, 30], [25, 27, 29, 31], False, [(24, 32), (26, 36), (28, 40), (30, 44)], "s44")
    e("  s_branch L_finloop")
    e("L_finend:")
    if DIAG:
        e("  s_waitcnt vmcnt(0)")
        e("  s_memtime s[94:95]")
        e("  s_memrealtime s[96:97]")
        e("  s_waitcnt lgkmcnt(0)")
        e("  s_sub_u32 s94, s94, s90")
        e("  s_sub_u32 s96, s96, s92")
        e("  s_cmp_lg_u32 s20, 0")
        e("  s_cbranch_scc1 L_done")
        e("  s_cmp_ge_u32 s2, 8")
        e("  s_cbranch_scc1 L_done")
        e("  s_lshl_b32 s46, s2, 3")
        e("  s_add_u32 s48, s14, s46")
        e("  s_addc_u32 s49, s15, 0")
        e("  s_mov_b32 s50, 8")
        e("  s_mov_b32 s51, 0x00020000")
        e("  v_mov_b32 v4, s94")
        e("  v_mov_b32 v5, s96")
        e("  v_lshlrev_b32 v3, 3, v2")
        e("  buffer_store_dwordx2 v[4:5], v3, s[48:51], 0 offen")
    if STAMP:
        e("  s_waitcnt vmcnt(0)")
        stamp()
        e("  s_waitcnt lgkmcnt(0)")
        e("  s_lshl_b32 s46, s2, 3")
        e("  s_add_u32 s46, s46, s20")
        e("  s_lshl_b32 s46, s46, 8")
        e("  s_add_u32 s46, s46, 0x2000000")
        e("  s_add_u32 s48, s10, s46")
        e("  s_addc_u32 s49, s11, 0")
        e("  s_mov_b32 s50, 256")
        e("  s_mov_b32 s51, 0x00020000")
        e("  v_mov_b32 v3, 0")
        for i_ in range(nstamp[0]):
            e(f"  v_mov_b32 v4, s{66+2*i_}")
            e(f"  v_mov_b32 v5, s{67+2*i_}")
            e(f"  buffer_store_dwordx2 v[4:5], v3, s[48:51], 0 offen offset:{8*i_}")
    e("L_done:")
    e("  s_endpgm")

e(HEADER.rstrip())
e(f"; @launch grid=(256,1,1) block=(512,1,1) lds={XLDS+64+4096}")
e('.amdgcn_target "amdgcn-amd-amdhsa--gfx950"')
e(".text")
kernel()
e('.section .rodata,"a"')
e(".p2align 6")
e(f".amdhsa_kernel {NAME}")
e("  .amdhsa_next_free_vgpr 256")
e(f"  .amdhsa_next_free_sgpr {102 if (STAMP or DIAG) else 72}")
e("  .amdhsa_accum_offset 256")
e("  .amdhsa_group_segment_fixed_size 0")
e("  .amdhsa_kernarg_size 48")
e("  .amdhsa_user_sgpr_count 2")
e("  .amdhsa_user_sgpr_kernarg_segment_ptr 1")
e("  .amdhsa_system_sgpr_workgroup_id_x 1")
e(".end_amdhsa_kernel")
open(sys.argv[1] if len(sys.argv) > 1 else "standalone__gqa_softmax__sampling.s", "w").write("\n".join(out) + "\n")
```

```python
import sys, os
POL = os.environ.get("POL", "nt")
PPOL = os.environ.get("PPOL", "sc1")
LPOL = os.environ.get("LPOL", "sc1")
STAMP = int(os.environ.get("STAMP", "0"))
DIAG = int(os.environ.get("DIAG", "0"))
PRIO = int(os.environ.get("PRIO", "1"))
FORCE_ABANDON = int(os.environ.get("FORCE_ABANDON", "0"))
nstamp = [0]
def stamp():
    if STAMP:
        i = nstamp[0]; nstamp[0] += 1
        e(f"  s_memtime s[{60+6+2*i}:{60+7+2*i}]")

HEADER = """; Kernarg layout for this problem (48 bytes, ptrs only, base s[0:1]):
"""
out = []
def e(s=""):
    out.append(s)

Q0 = 16; KF = 48; VF = 80; SA = 112; SB = 128; P0 = 144; O0 = 160
KA = 224; VA = 232; DK0, DK1, DV = 236, 237, 238
VM, VL = 239, 240
T0 = 241
ML_OFF = 16 * 1024 * 1024
FLAG_OFF = 17 * 1024 * 1024
XLDS = 131072
NAME = "standalone__gqa_softmax__sampling_kernel"

def dma_k(t):
    e(f"  s_add_u32 s38, s37, {(t&3)*16384}")
    e("  s_mov_b32 m0, s38")
    e(f"  s_mov_b32 s39, {t*16384}")
    e(f"  buffer_load_dwordx4 v{DK0}, s[28:31], s39 offen {POL} lds")
    e(f"  buffer_load_dwordx4 v{DK1}, s[28:31], s39 offen offset:1024 {POL} lds")
def dma_v(t):
    e(f"  s_add_u32 s38, s37, {65536+(t&3)*16384}")
    e("  s_mov_b32 m0, s38")
    e(f"  s_mov_b32 s39, {t*16384}")
    e(f"  buffer_load_dwordx4 v{DV}, s[32:35], s39 offen {POL} lds")
    e(f"  buffer_load_dwordx4 v{DV}, s[32:35], s39 offen offset:1024 {POL} lds")

WAITS = {0: 6, 6: 6, 7: 4, 8: 2, 9: 0}
def top(i):
    n = WAITS.get(i, 8)
    e(f"  ; ---- interval {i} ----")
    e(f"  s_waitcnt vmcnt({n})")
    e("  s_barrier")
    if i in (0, 1, 9): stamp()
    if i + 3 <= 7: dma_k(i + 3)
    if i + 1 <= 7: dma_v(i + 1)

def vread1(slot, s, idx):
    t, ee = idx >> 1, idx & 1
    bb = VF + (s & 1)*16 + t*4 + 2*ee
    e(f"  ds_read_b64_tr_b16 v[{bb}:{bb+1}], v{VA+t} offset:{slot+(16*s+8*ee)*256}")
def vreads(slot, s):
    for idx in range(8): vread1(slot, s, idx)
def pvm(s):
    for t in range(4):
        bb = VF + (s & 1)*16 + t*4
        e(f"  v_mfma_f32_32x32x16_bf16 v[{O0+16*t}:{O0+16*t+15}], v[{bb}:{bb+3}], v[{P0+4*s}:{P0+4*s+3}], v[{O0+16*t}:{O0+16*t+15}]")

def mfma_phase(tk, tv):
    if PRIO: e("  s_setprio 1")
    vs = None if tv is None else (tv & 3) * 16384
    if tk is not None:
        slot = (tk & 3) * 16384
        for st in range(8):
            e(f"  ds_read_b128 v[{KF+4*st}:{KF+4*st+3}], v{KA+st} offset:{slot}")
        for st in range(8):
            e("  s_waitcnt lgkmcnt(7)")
            c = "0" if st == 0 else f"v[{SA}:{SA+15}]"
            e(f"  v_mfma_f32_32x32x16_bf16 v[{SA}:{SA+15}], v[{KF+4*st}:{KF+4*st+3}], v[{Q0+4*st}:{Q0+4*st+3}], {c}")
            e(f"  ds_read_b128 v[{KF+4*st}:{KF+4*st+3}], v{KA+st} offset:{slot+8192}")
        for st in range(8):
            if tv is not None:
                e(f"  s_waitcnt lgkmcnt({min(7+st, 13)})" if st < 7 else "  s_waitcnt lgkmcnt(13)")
            else:
                e(f"  s_waitcnt lgkmcnt({7-st})")
            c = "0" if st == 0 else f"v[{SB}:{SB+15}]"
            e(f"  v_mfma_f32_32x32x16_bf16 v[{SB}:{SB+15}], v[{KF+4*st}:{KF+4*st+3}], v[{Q0+4*st}:{Q0+4*st+3}], {c}")
            if tv is not None:
                vread1(vs, st >> 2, 2*(st & 3)); vread1(vs, st >> 2, 2*(st & 3) + 1)
    elif tv is not None:
        vreads(vs, 0); vreads(vs, 1)
    if tv is not None:
        e("  s_waitcnt lgkmcnt(8)"); pvm(0)
        vreads(vs, 2)
        e("  s_waitcnt lgkmcnt(8)"); pvm(1)
        vreads(vs, 3)
        e("  s_waitcnt lgkmcnt(8)"); pvm(2)
        e("  s_waitcnt lgkmcnt(0)"); pvm(3)
    if PRIO: e("  s_setprio 0")

def valu_phase(lab):
    a = lambda i: f"v{SA+i}"
    b = lambda i: f"v{SB+i}"
    t_ = lambda i: f"v{T0+i}"
    e(f"  v_max3_f32 {t_(0)}, {a(0)}, {a(1)}, {a(2)}")
    e(f"  v_max3_f32 {t_(1)}, {a(3)}, {a(4)}, {a(5)}")
    e(f"  v_max3_f32 {t_(2)}, {a(6)}, {a(7)}, {a(8)}")
    e(f"  v_max3_f32 {t_(3)}, {a(9)}, {a(10)}, {a(11)}")
    e(f"  v_max3_f32 {t_(4)}, {a(12)}, {a(13)}, {a(14)}")
    e(f"  v_max3_f32 {t_(0)}, {t_(0)}, {t_(1)}, {a(15)}")
    e(f"  v_max3_f32 {t_(2)}, {t_(2)}, {t_(3)}, {t_(4)}")
    e(f"  v_max3_f32 {t_(1)}, {b(0)}, {b(1)}, {b(2)}")
    e(f"  v_max3_f32 {t_(3)}, {b(3)}, {b(4)}, {b(5)}")
    e(f"  v_max3_f32 {t_(4)}, {b(6)}, {b(7)}, {b(8)}")
    e(f"  v_max3_f32 {t_(5)}, {b(9)}, {b(10)}, {b(11)}")
    e(f"  v_max3_f32 {t_(6)}, {b(12)}, {b(13)}, {b(14)}")
    e(f"  v_max3_f32 {t_(0)}, {t_(0)}, {t_(2)}, {b(15)}")
    e(f"  v_max3_f32 {t_(1)}, {t_(1)}, {t_(3)}, {t_(4)}")
    e(f"  v_max3_f32 {t_(0)}, {t_(0)}, {t_(5)}, {t_(6)}")
    e(f"  v_max_f32 {t_(0)}, {t_(0)}, {t_(1)}")
    e(f"  v_mov_b32 {t_(1)}, {t_(0)}")
    e(f"  v_add_f32 {t_(2)}, s57, v{VM}")
    e("  s_nop 0")
    e(f"  v_permlane32_swap_b32 {t_(0)}, {t_(1)}")
    e(f"  v_max_f32 {t_(0)}, {t_(0)}, {t_(1)}")
    e(f"  v_mul_f32 {t_(0)}, s41, {t_(0)}")
    e(f"  v_cmp_gt_f32 vcc, {t_(0)}, {t_(2)}")
    e("  s_nop 1")
    e(f"  s_cbranch_vccz L_skip_{lab}")
    e(f"  v_max_f32 {t_(0)}, v{VM}, {t_(0)}")
    e(f"  v_sub_f32 {t_(1)}, v{VM}, {t_(0)}")
    e(f"  v_exp_f32 {t_(1)}, {t_(1)}")
    e(f"  v_mov_b32 v{VM}, {t_(0)}")
    for r in range(64):
        e(f"  v_mul_f32 v{O0+r}, {t_(1)}, v{O0+r}")
    e(f"  v_mul_f32 v{VL}, {t_(1)}, v{VL}")
    e(f"L_skip_{lab}:")
    for i in range(16):
        e(f"  v_fma_f32 {a(i)}, {a(i)}, s41, -v{VM}")
    for i in range(16):
        e(f"  v_exp_f32 {a(i)}, {a(i)}")
    for i in range(16):
        e(f"  v_fma_f32 {b(i)}, {b(i)}, s41, -v{VM}")
    for i in range(16):
        e(f"  v_exp_f32 {b(i)}, {b(i)}")
        if i % 2 == 1:
            j = i - 1
            e(f"  v_add_f32 {t_(j%4)}, {a(j)}, {a(j+1)}")
            e(f"  v_cvt_pk_bf16_f32 v{P0+j//2}, {a(j)}, {a(j+1)}")
            e(f"  v_add_f32 v{VL}, v{VL}, {t_(j%4)}")
    for i in range(0, 16, 2):
        e(f"  v_add_f32 {t_(i%4)}, {b(i)}, {b(i+1)}")
        e(f"  v_cvt_pk_bf16_f32 v{P0+8+i//2}, {b(i)}, {b(i+1)}")
        e(f"  v_add_f32 v{VL}, v{VL}, {t_(i%4)}")

def kernel():
    e(f".globl {NAME}")
    e(".p2align 8")
    e(f".type {NAME},@function")
    e(f"{NAME}:")
    e("  s_cmp_ge_u32 s2, 256")
    e("  s_cbranch_scc1 L_done")
    if DIAG:
        e("  s_memtime s[90:91]")
        e("  s_memrealtime s[92:93]")
    e("  s_load_dwordx4 s[4:7], s[0:1], 0      ; q, k")
    e("  s_load_dwordx2 s[8:9], s[0:1], 16     ; v")
    e("  s_load_dwordx4 s[12:15], s[0:1], 24")
    e("  s_load_dwordx2 s[10:11], s[0:1], 40   ; ws")
    e("  v_lshrrev_b32 v1, 6, v0")
    e("  v_and_b32 v2, 63, v0                  ; lane")
    e("  v_readfirstlane_b32 s20, v1")
    e("  s_nop 3")
    e("  s_and_b32 s21, s20, 3                 ; q tile")
    e("  s_lshr_b32 s22, s20, 2                ; group")
    e("  s_lshr_b32 s58, s2, 2                 ; g")
    e("  s_and_b32 s59, s2, 3                  ; split")
    e("  v_and_b32 v3, 31, v2                  ; l&31")
    e("  v_lshrrev_b32 v4, 5, v2               ; h")
    e("  v_and_b32 v5, 15, v2                  ; i = l&15")
    e("  v_lshrrev_b32 v6, 4, v2               ; g = l>>4")
    e("  s_lshl_b32 s36, s20, 3")
    e("  v_add_u32 v8, s36, v6")
    e("  v_and_b32 v9, 15, v8")
    e("  v_xor_b32 v9, v9, v5")
    e(f"  v_lshlrev_b32 v{DK0}, 8, v8")
    e(f"  v_lshl_add_u32 v{DK0}, v9, 4, v{DK0}")
    e("  v_add_u32 v10, 4, v8")
    e("  v_and_b32 v9, 15, v10")
    e("  v_xor_b32 v9, v9, v5")
    e(f"  v_lshlrev_b32 v{DK1}, 8, v10")
    e(f"  v_lshl_add_u32 v{DK1}, v9, 4, v{DK1}")
    e(f"  v_subrev_u32 v{DK1}, 1024, v{DK1}")
    e("  v_lshlrev_b32 v9, 2, v6")
    e("  v_xor_b32 v9, v9, v5")
    e(f"  v_lshlrev_b32 v{DV}, 8, v8")
    e(f"  v_lshl_add_u32 v{DV}, v9, 4, v{DV}")
    e("  s_lshl_b32 s37, s20, 11")
    e("  s_lshl_b32 s23, s2, 17")
    e("  s_waitcnt lgkmcnt(0)")
    e("  s_lshr_b32 s24, s58, 2")
    e("  s_lshl_b32 s24, s24, 2")
    e("  s_add_u32 s24, s24, 192")
    e("  s_and_b32 s65, s58, 3")
    e("  s_lshl_b32 s65, s65, 3")
    e("  s_add_u32 s60, s14, s24")
    e("  s_addc_u32 s61, s15, 0")
    e("  s_mov_b32 s62, 4")
    e("  s_mov_b32 s63, 0x00020000")
    e("  v_lshlrev_b32 v15, 2, v2")
    e("  s_cmp_lg_u32 s20, 0")
    e("  s_cbranch_scc1 L_noarrive")
    e("  s_lshl_b32 s24, s2, 7")
    e(f"  s_add_u32 s24, s24, {FLAG_OFF}")
    e("  s_add_u32 s16, s10, s24")
    e("  s_addc_u32 s17, s11, 0")
    e("  s_mov_b32 s18, 4")
    e("  s_mov_b32 s19, 0x00020000")
    e("  v_mov_b32 v14, 0")
    e("  buffer_store_dword v14, v15, s[16:19], 0 offen sc1")
    e("L_noarrive:")
    e("  s_add_u32 s28, s6, s23")
    e("  s_addc_u32 s29, s7, 0")
    e("  s_mov_b32 s30, 131072")
    e("  s_mov_b32 s31, 0x00020000")
    dma_k(0)
    e("  s_add_u32 s32, s8, s23")
    e("  s_addc_u32 s33, s9, 0")
    e("  s_mov_b32 s34, 131072")
    e("  s_mov_b32 s35, 0x00020000")
    e("  s_lshl_b32 s23, s58, 2")
    e("  s_add_u32 s23, s23, s21")
    e("  s_lshl_b32 s23, s23, 13")
    e("  s_add_u32 s24, s4, s23")
    e("  s_addc_u32 s25, s5, 0")
    e("  s_mov_b32 s26, 8192")
    e("  s_mov_b32 s27, 0x00020000")
    e("  v_lshlrev_b32 v7, 8, v3")
    e("  v_lshl_add_u32 v7, v4, 4, v7")
    for st in range(8):
        e(f"  buffer_load_dwordx4 v[{Q0+4*st}:{Q0+4*st+3}], v7, s[24:27], 0 offen offset:{32*st}")
    dma_k(1); dma_v(0); dma_k(2)
    e("  v_lshlrev_b32 v8, 8, v3")
    for st in range(8):
        e(f"  v_add_u32 v9, {2*st}, v4")
        e("  v_xor_b32 v9, v9, v5")
        e(f"  v_lshl_add_u32 v{KA+st}, v9, 4, v8")
    e("  v_lshrrev_b32 v9, 2, v5")
    e("  v_lshl_add_u32 v10, v4, 2, v9")
    e("  v_lshlrev_b32 v10, 8, v10")
    e("  v_add_u32 v10, 0x10000, v10")
    e("  v_and_b32 v11, 1, v6")
    e("  v_lshl_add_u32 v10, v11, 5, v10")
    e("  v_and_b32 v11, 3, v5")
    e("  v_lshl_add_u32 v10, v11, 3, v10")
    for t in range(4):
        e(f"  v_xor_b32 v11, {t}, v9")
        e(f"  v_lshl_add_u32 v{VA+t}, v11, 6, v10")
    for r in range(64):
        e(f"  v_mov_b32 v{O0+r}, 0")
    e(f"  v_mov_b32 v{VM}, 0xff800000")
    e(f"  v_mov_b32 v{VL}, 0")
    e("  s_mov_b32 s41, 0x3e0293ee")
    e("  s_mov_b32 s57, 0x41000000             ; T = 8")
    stamp()
    e("  s_cmp_ge_u32 s22, 1")
    e("  s_cbranch_scc1 L_groupB")
    e("  ; ---- interval 0 (A) ----")
    e("  s_waitcnt vmcnt(6)")
    e("  s_cmp_lg_u32 s20, 0")
    e("  s_cbranch_scc1 L_noarr2")
    e("  s_lshl_b32 s24, 1, s65")
    e("  v_mov_b32 v14, s24")
    e("  buffer_atomic_add v14, v15, s[60:63], 0 offen sc1")
    e("L_noarr2:")
    e("  s_barrier")
    if DIAG: e("  s_memtime s[88:89]")
    stamp()
    dma_k(3); dma_v(1)
    mfma_phase(0, None)
    for j in range(4):
        top(2*j+1); valu_phase(f"a{j}")
        top(2*j+2); mfma_phase(2*j+2 if j < 3 else None, 2*j)
    top(9)
    e("  s_branch L_epi")
    e("L_groupB:")
    nstamp[0] = 1
    top(0)
    top(1); mfma_phase(1, None)
    for j in range(4):
        top(2*j+2); valu_phase(f"b{j}")
        top(2*j+3); mfma_phase(2*j+3 if j < 3 else None, 2*j+1)
    e("L_epi:")
    stamp()
    if DIAG: e("  s_memtime s[98:99]")
    t_ = lambda i: f"v{T0+i}"
    e("  s_cmp_lg_u32 s20, 0")
    e("  s_cbranch_scc1 L_nard")
    e("  buffer_load_dword v104, v15, s[60:63], 0 offen sc1")
    e("L_nard:")
    e(f"  v_mov_b32 {t_(1)}, v{VL}")
    e("  s_nop 7")
    e("  s_nop 7")
    e(f"  v_permlane32_swap_b32 v{VL}, {t_(1)}")
    e(f"  v_add_f32 v{VL}, v{VL}, {t_(1)}")
    e("  s_barrier")
    stamp()
    e("  s_lshl_b32 s43, s20, 14")
    e("  v_lshlrev_b32 v8, 4, v2")
    e("  v_add_u32 v9, s43, v8")
    for qd in range(16):
        e(f"  ds_write_b128 v9, v[{O0+4*qd}:{O0+4*qd+3}] offset:{1024*qd}")
    e("  s_lshl_b32 s43, s20, 9")
    e("  v_lshlrev_b32 v10, 3, v2")
    e("  v_add_u32 v11, s43, v10")
    e(f"  v_add_u32 v11, {XLDS+64}, v11")
    e(f"  v_mov_b32 v12, v{VM}")
    e(f"  v_mov_b32 v13, v{VL}")
    e("  ds_write_b64 v11, v[12:13]")
    e("  s_cmp_lg_u32 s20, 0")
    e("  s_cbranch_scc1 L_nard2")
    e("  s_waitcnt vmcnt(0)")
    e("  v_readfirstlane_b32 s46, v104")
    e("  s_nop 3")
    e("  s_lshr_b32 s46, s46, s65")
    e("  s_and_b32 s46, s46, 0xff")
    if FORCE_ABANDON:
        e("  s_cmp_lg_u32 s59, 1")
    else:
        e("  s_cmp_lg_u32 s46, 4")
    e("  s_cselect_b32 s47, 2, 1")
    e(f"  v_mov_b32 v105, {XLDS}")
    e("  v_mov_b32 v106, s47")
    e("  ds_write_b32 v105, v106")
    e("L_nard2:")
    e("  s_waitcnt lgkmcnt(0)")
    stamp()
    e("  s_barrier")
    stamp()
    e(f"  v_mov_b32 v105, {XLDS}")
    e("  ds_read_b32 v106, v105")
    e("  s_lshl_b32 s43, s20, 11")
    e("  v_add_u32 v9, s43, v8")
    e(f"  v_add_u32 v10, {XLDS+64}, v10")
    e("  s_lshl_b32 s46, s2, 15")
    e("  s_add_u32 s48, s10, s46")
    e("  s_addc_u32 s49, s11, 0")
    e("  s_mov_b32 s50, 32768")
    e("  s_mov_b32 s51, 0x00020000")
    e("  s_lshl_b32 s40, s20, 10               ; w*1024")
    e("  s_waitcnt lgkmcnt(0)")
    e("  v_readfirstlane_b32 s47, v106")
    def rd(j):
        rb = 16 + 16*j; mb = 80 + 4*j
        e(f"  ds_read_b64 v[{mb}:{mb+1}], v10 offset:{j*512}")
        e(f"  ds_read_b64 v[{mb+2}:{mb+3}], v10 offset:{(j+4)*512}")
        e(f"  v_add_u32 v14, {j*16384}, v9")
        e(f"  ds_read_b128 v[{rb}:{rb+3}], v14")
        e(f"  ds_read_b128 v[{rb+4}:{rb+7}], v14 offset:1024")
        e(f"  v_add_u32 v14, {(j+4)*16384}, v9")
        e(f"  ds_read_b128 v[{rb+8}:{rb+11}], v14")
        e(f"  ds_read_b128 v[{rb+12}:{rb+15}], v14 offset:1024")
    rd(0); rd(1)
    for j in range(4):
        rb = 16 + 16*j; mb = 80 + 4*j
        e(f"  s_waitcnt lgkmcnt({6 if j < 3 else 0})")
        if j + 2 < 4: rd(j + 2)
        e(f"  v_max_f32 v100, v{mb}, v{mb+2}")
        e(f"  v_sub_f32 v101, v{mb}, v100")
        e(f"  v_sub_f32 v102, v{mb+2}, v100")
        e("  v_exp_f32 v101, v101")
        e("  v_exp_f32 v102, v102")
        e("  s_nop 0")
        e(f"  v_mul_f32 v103, v101, v{mb+1}")
        e(f"  v_fma_f32 v{mb+1}, v102, v{mb+3}, v103     ; L")
        e(f"  v_mov_b32 v{mb}, v100                       ; M")
        for r in range(8):
            e(f"  v_mul_f32 v{rb+r}, v101, v{rb+r}")
            e(f"  v_fma_f32 v{rb+r}, v102, v{rb+8+r}, v{rb+r}")
        for r in range(4):
            e(f"  v_cvt_pk_bf16_f32 v{rb+8+r}, v{rb+2*r}, v{rb+2*r+1}")
        e(f"  s_cmp_lg_u32 s59, {j}")
        e(f"  s_cbranch_scc1 L_st{j}")
        for r in range(8):
            e(f"  v_mov_b32 v{108+r}, v{rb+r}")
        e(f"  v_mov_b32 v116, v{mb}")
        e(f"  v_mov_b32 v117, v{mb+1}")
        e("  s_cmp_eq_u32 s47, 1")
        e(f"  s_cbranch_scc1 L_nost{j}")
        e(f"L_st{j}:")
        e(f"  s_add_u32 s46, s40, {j*8192}")
        e(f"  buffer_store_dwordx4 v[{rb+8}:{rb+11}], v8, s[48:51], s46 offen {PPOL}")
        e(f"L_nost{j}:")
    e("  s_cmp_lg_u32 s20, 0")
    e("  s_cbranch_scc1 L_noml")
    e("  s_lshl_b32 s46, s2, 10")
    e(f"  s_add_u32 s46, s46, {ML_OFF}")
    e("  s_add_u32 s52, s10, s46")
    e("  s_addc_u32 s53, s11, 0")
    e("  v_lshlrev_b32 v14, 3, v2")
    e("  s_mov_b32 s55, 0x00020000")
    e("  s_mov_b32 s54, 1024")
    e("  v_cmp_gt_u32 vcc, 32, v2")
    e("  s_and_saveexec_b64 s[44:45], vcc")
    for j in range(4):
        mb = 80 + 4*j
        e(f"  buffer_store_dwordx2 v[{mb}:{mb+1}], v14, s[52:55], 0 offen offset:{j*256} {PPOL}")
    e("  s_mov_b64 exec, s[44:45]")
    e("L_noml:")
    stamp()
    e("  s_waitcnt vmcnt(0)")
    stamp()
    e("  s_barrier")
    stamp()
    e("  s_cmp_lg_u32 s20, 0")
    e("  s_cbranch_scc1 L_w_notzero")
    e("  v_mov_b32 v104, s47")
    e("  buffer_store_dword v104, v15, s[16:19], 0 offen sc1")
    e("  s_cmp_eq_u32 s47, 2")
    e("  s_cbranch_scc1 L_w_notzero")
    e("  s_lshl_b32 s24, s58, 9")
    e(f"  s_add_u32 s24, s24, {FLAG_OFF}")
    e("  s_add_u32 s16, s10, s24")
    e("  s_addc_u32 s17, s11, 0")
    e("  s_mov_b32 s18, 512")
    e("  v_lshlrev_b32 v105, 7, v2")
    e("L_poll:")
    e("  buffer_load_dword v104, v105, s[16:19], 0 offen sc1")
    e("  s_waitcnt vmcnt(0)")
    e("  v_readlane_b32 s24, v104, 0")
    e("  v_readlane_b32 s25, v104, 1")
    e("  v_readlane_b32 s26, v104, 2")
    e("  v_readlane_b32 s27, v104, 3")
    e("  s_nop 3")
    e("  s_min_u32 s44, s24, s25")
    e("  s_min_u32 s45, s26, s27")
    e("  s_min_u32 s44, s44, s45")
    e("  s_cmp_eq_u32 s44, 0")
    e("  s_cbranch_scc0 L_polldone")
    e("  s_sleep 1")
    e("  s_branch L_poll")
    e("L_polldone:")
    e("  s_mov_b32 s44, 0")
    e("  s_mov_b32 s45, 0")
    for sp, r in enumerate(("s24", "s25", "s26", "s27")):
        e(f"  s_cmp_eq_u32 {r}, 2")
        e(f"  s_cselect_b32 s46, {1 << sp}, 0")
        e(f"  s_cselect_b32 s42, 0, {1 << sp}")
        e("  s_or_b32 s44, s44, s46")
        e("  s_or_b32 s45, s45, s42")
    e("  s_ff1_i32_b32 s46, s45")
    e("  s_cmp_eq_u32 s46, s59")
    e("  s_cselect_b32 s42, s44, 0")
    e(f"  v_mov_b32 v105, {XLDS+4}")
    e("  v_mov_b32 v106, s42")
    e("  ds_write_b32 v105, v106")
    e("  s_waitcnt lgkmcnt(0)")
    e("L_w_notzero:")
    e("  s_barrier")
    e("  s_cmp_eq_u32 s47, 2")
    e("  s_cbranch_scc1 L_done")
    stamp()
    e("  s_lshl_b32 s46, s58, 17")
    e("  s_add_u32 s48, s10, s46")
    e("  s_addc_u32 s49, s11, 0")
    e("  s_mov_b32 s50, 131072")
    e("  s_lshl_b32 s46, s58, 12")
    e(f"  s_add_u32 s46, s46, {ML_OFF}")
    e("  s_add_u32 s52, s10, s46")
    e("  s_addc_u32 s53, s11, 0")
    e("  s_mov_b32 s54, 4096")
    e("  s_mov_b32 s55, 0x00020000")
    e("  v_and_b32 v20, 31, v2")
    e("  v_lshlrev_b32 v20, 3, v20")
    e("  s_lshl_b32 s44, s59, 8                 ; j*256")
    e("  s_lshl_b32 s45, s59, 13")
    e("  s_add_u32 s45, s45, s40                ; j*8192 + w*1024")
    for k in range(1, 4):
        e(f"  s_add_u32 s46, s59, {k}")
        e("  s_and_b32 s46, s46, 3")
        e("  s_lshl_b32 s24, s46, 10")
        e("  s_add_u32 s24, s24, s44")
        e(f"  buffer_load_dwordx2 v[{22+2*k}:{23+2*k}], v20, s[52:55], s24 offen {LPOL}")
        e("  s_lshl_b32 s24, s46, 15")
        e("  s_add_u32 s24, s24, s45")
        e(f"  buffer_load_dwordx4 v[{28+4*k}:{31+4*k}], v8, s[48:51], s24 offen {LPOL}")
    e(f"  v_mov_b32 v105, {XLDS+4}")
    e("  ds_read_b32 v106, v105")
    e("  v_lshrrev_b32 v6, 5, v2")
    e("  v_and_b32 v7, 31, v2")
    e("  v_lshlrev_b32 v7, 8, v7")
    e("  v_lshl_add_u32 v7, v6, 4, v7")
    e("  s_lshl_b32 s46, s20, 5")
    e("  v_add_u32 v7, s46, v7")
    e("  s_mov_b32 s61, 0xffff0000")
    e("  s_waitcnt lgkmcnt(0)")
    e("  v_readfirstlane_b32 s42, v106")
    def fin(ms, ls, first_fp32, srcs, jreg):
        e(f"  v_max_f32 v16, v{ms[0]}, v{ms[1]}")
        e(f"  v_max3_f32 v16, v16, v{ms[2]}, v{ms[3]}")
        for m in ms: e(f"  v_sub_f32 v{m}, v{m}, v16")
        for m in ms: e(f"  v_exp_f32 v{m}, v{m}")
        e("  s_nop 0")
        e(f"  v_mul_f32 v17, v{ms[0]}, v{ls[0]}")
        for i in range(1, 4): e(f"  v_fma_f32 v17, v{ms[i]}, v{ls[i]}, v17")
        e("  v_rcp_f32 v17, v17")
        e("  s_nop 0")
        for m in ms: e(f"  v_mul_f32 v{m}, v{m}, v17")
        if first_fp32:
            for r in range(8): e(f"  v_mul_f32 v{108+r}, v{ms[0]}, v{108+r}")
        for idx, (mi, src) in enumerate(srcs):
            for d in range(4):
                e(f"  v_lshlrev_b32 v18, 16, v{src+d}")
                e(f"  v_and_b32 v19, s61, v{src+d}")
                if idx == 0 and not first_fp32:
                    e(f"  v_mul_f32 v{108+2*d}, v{mi}, v18")
                    e(f"  v_mul_f32 v{109+2*d}, v{mi}, v19")
                else:
                    e(f"  v_fma_f32 v{108+2*d}, v{mi}, v18, v{108+2*d}")
                    e(f"  v_fma_f32 v{109+2*d}, v{mi}, v19, v{109+2*d}")
        for jj in range(4):
            e(f"  v_cvt_pk_bf16_f32 v{64+jj}, v{108+2*jj}, v{109+2*jj}")
        e("  s_nop 1")
        e("  v_permlane32_swap_b32 v64, v66")
        e("  v_permlane32_swap_b32 v65, v67")
        e("  s_lshl_b32 s46, s58, 2")
        e(f"  s_add_u32 s46, s46, {jreg}")
        e("  s_lshl_b32 s46, s46, 13")
        e("  s_add_u32 s28, s12, s46")
        e("  s_addc_u32 s29, s13, 0")
        e("  s_mov_b32 s30, 8192")
        e("  s_mov_b32 s31, 0x00020000")
        e("  buffer_store_dwordx4 v[64:67], v7, s[28:31], 0 offen")
    e("  s_waitcnt vmcnt(0)")
    fin([116, 24, 26, 28], [117, 25, 27, 29], True, [(24, 32), (26, 36), (28, 40)], "s59")
    e("L_finloop:")
    e("  s_cmp_eq_u32 s42, 0")
    e("  s_cbranch_scc1 L_finend")
    e("  s_ff1_i32_b32 s44, s42                ; j")
    e("  s_lshl_b32 s45, 1, s44")
    e("  s_andn2_b32 s42, s42, s45")
    e("  s_lshl_b32 s45, s44, 8")
    for sp in range(4):
        e(f"  buffer_load_dwordx2 v[{24+2*sp}:{25+2*sp}], v20, s[52:55], s45 offen offset:{1024*sp} {LPOL}")
    e("  s_lshl_b32 s45, s44, 13")
    e("  s_add_u32 s45, s45, s40")
    for sp in range(4):
        e(f"  buffer_load_dwordx4 v[{32+4*sp}:{35+4*sp}], v8, s[48:51], s45 offen {LPOL}")
        if sp < 3: e("  s_add_u32 s45, s45, 32768")
    e("  s_waitcnt vmcnt(0)")
    fin([24, 26, 28, 30], [25, 27, 29, 31], False, [(24, 32), (26, 36), (28, 40), (30, 44)], "s44")
    e("  s_branch L_finloop")
    e("L_finend:")
    if DIAG:
        e("  s_waitcnt vmcnt(0)")
        e("  s_memtime s[94:95]")
        e("  s_memrealtime s[96:97]")
        e("  s_waitcnt lgkmcnt(0)")
        e("  s_sub_u32 s94, s94, s90")
        e("  s_sub_u32 s96, s96, s92")
        e("  s_cmp_lg_u32 s20, 0")
        e("  s_cbranch_scc1 L_done")
        e("  s_cmp_ge_u32 s2, 4")
        e("  s_cbranch_scc1 L_done")
        e("  s_sub_u32 s98, s98, s90")
        e("  s_sub_u32 s88, s88, s90")
        e("  s_lshl_b32 s46, s2, 4")
        e("  s_add_u32 s48, s14, s46")
        e("  s_addc_u32 s49, s15, 0")
        e("  s_mov_b32 s50, 16")
        e("  s_mov_b32 s51, 0x00020000")
        e("  v_mov_b32 v4, s88")
        e("  v_mov_b32 v5, s98")
        e("  v_mov_b32 v6, s94")
        e("  v_mov_b32 v7, s96")
        e("  v_lshlrev_b32 v3, 4, v2")
        e("  buffer_store_dwordx4 v[4:7], v3, s[48:51], 0 offen")
    if STAMP:
        e("  s_waitcnt vmcnt(0)")
        stamp()
        e("  s_waitcnt lgkmcnt(0)")
        e("  s_lshl_b32 s46, s2, 3")
        e("  s_add_u32 s46, s46, s20")
        e("  s_lshl_b32 s46, s46, 8")
        e("  s_add_u32 s46, s46, 0x2000000")
        e("  s_add_u32 s48, s10, s46")
        e("  s_addc_u32 s49, s11, 0")
        e("  s_mov_b32 s50, 256")
        e("  s_mov_b32 s51, 0x00020000")
        e("  v_mov_b32 v3, 0")
        for i_ in range(nstamp[0]):
            e(f"  v_mov_b32 v4, s{66+2*i_}")
            e(f"  v_mov_b32 v5, s{67+2*i_}")
            e(f"  buffer_store_dwordx2 v[4:5], v3, s[48:51], 0 offen offset:{8*i_}")
    e("L_done:")
    e("  s_endpgm")

e(HEADER.rstrip())
e(f"; @launch grid=(256,1,1) block=(512,1,1) lds={XLDS+64+4096}")
e('.amdgcn_target "amdgcn-amd-amdhsa--gfx950"')
e(".text")
kernel()
e('.section .rodata,"a"')
e(".p2align 6")
e(f".amdhsa_kernel {NAME}")
e("  .amdhsa_next_free_vgpr 256")
e(f"  .amdhsa_next_free_sgpr {102 if (STAMP or DIAG) else 72}")
e("  .amdhsa_accum_offset 256")
e("  .amdhsa_group_segment_fixed_size 0")
e("  .amdhsa_kernarg_size 48")
e("  .amdhsa_user_sgpr_count 2")
e("  .amdhsa_user_sgpr_kernarg_segment_ptr 1")
e("  .amdhsa_system_sgpr_workgroup_id_x 1")
e(".end_amdhsa_kernel")
open(sys.argv[1] if len(sys.argv) > 1 else "standalone__gqa_softmax__sampling.s", "w").write("\n".join(out) + "\n")
```

```python
import sys, os
POL = os.environ.get("POL", "nt")
PPOL = os.environ.get("PPOL", "sc1")
LPOL = os.environ.get("LPOL", "sc1")
STAMP = int(os.environ.get("STAMP", "0"))
DIAG = int(os.environ.get("DIAG", "0"))
PRIO = int(os.environ.get("PRIO", "1"))
FORCE_ABANDON = int(os.environ.get("FORCE_ABANDON", "0"))
nstamp = [0]
def stamp():
    if STAMP:
        i = nstamp[0]; nstamp[0] += 1
        e(f"  s_memtime s[{60+6+2*i}:{60+7+2*i}]")

HEADER = """; Kernarg layout for this problem (48 bytes, ptrs only, base s[0:1]):
"""
out = []
def e(s=""):
    out.append(s)

Q0 = 16; KF = 48; VF = 80; SA = 112; SB = 128; P0 = 144; O0 = 160
KA2 = [3, 4, 5, 6, 7, 9, 10, 11]
KA = 224; VA = 232; DK0, DK1, DV = 236, 237, 238
VM, VL = 239, 240
T0 = 241
ML_OFF = 16 * 1024 * 1024
FLAG_OFF = 17 * 1024 * 1024
XLDS = 131072
NAME = "standalone__gqa_softmax__sampling_kernel"

def dma_k(t):
    e(f"  s_add_u32 s38, s37, {(t%5)*16384}")
    e("  s_mov_b32 m0, s38")
    e(f"  s_mov_b32 s39, {t*16384}")
    e(f"  buffer_load_dwordx4 v{DK0}, s[28:31], s39 offen {POL} lds")
    e(f"  buffer_load_dwordx4 v{DK1}, s[28:31], s39 offen offset:1024 {POL} lds")
def dma_v(t):
    e(f"  s_add_u32 s38, s37, {81920+(t%5)*16384}")
    e("  s_mov_b32 m0, s38")
    e(f"  s_mov_b32 s39, {t*16384}")
    e(f"  buffer_load_dwordx4 v{DV}, s[32:35], s39 offen {POL} lds")
    e(f"  buffer_load_dwordx4 v{DV}, s[32:35], s39 offen offset:1024 {POL} lds")

WAITS = {0: 10, 5: 10, 6: 8, 7: 4, 8: 2, 9: 0}
def top(i):
    n = WAITS.get(i, 12)
    e(f"  ; ---- interval {i} ----")
    e(f"  s_waitcnt vmcnt({n})")
    e("  s_barrier")
    if i in (0, 1, 9): stamp()
    if i + 4 <= 7: dma_k(i + 4)
    if i + 2 <= 7: dma_v(i + 2)

def vread1(slot, s, idx):
    t, ee = idx >> 1, idx & 1
    bb = VF + (s & 1)*16 + t*4 + 2*ee
    base = VA
    if slot >= 65536:
        base = T0 + 0; slot -= 65536
    e(f"  ds_read_b64_tr_b16 v[{bb}:{bb+1}], v{base+t} offset:{slot+(16*s+8*ee)*256}")
def vreads(slot, s):
    for idx in range(8): vread1(slot, s, idx)
def pvm(s):
    for t in range(4):
        bb = VF + (s & 1)*16 + t*4
        e(f"  v_mfma_f32_32x32x16_bf16 v[{O0+16*t}:{O0+16*t+15}], v[{bb}:{bb+3}], v[{P0+4*s}:{P0+4*s+3}], v[{O0+16*t}:{O0+16*t+15}]")

def mfma_phase(tk, tv):
    if PRIO: e("  s_setprio 1")
    vs = None if tv is None else (tv % 5) * 16384
    if vs is not None and vs >= 65536:
        for t in range(4): e(f"  v_add_u32 v{T0+t}, 0x10000, v{VA+t}")
    if tk is not None:
        slot = (tk % 5) * 16384
        kreg = lambda st: KA + st
        if slot >= 65536:
            slot -= 65536
            kreg = lambda st: KA2[st]
        for st in range(8):
            e(f"  ds_read_b128 v[{KF+4*st}:{KF+4*st+3}], v{kreg(st)} offset:{slot}")
        for st in range(8):
            e("  s_waitcnt lgkmcnt(7)")
            c = "0" if st == 0 else f"v[{SA}:{SA+15}]"
            e(f"  v_mfma_f32_32x32x16_bf16 v[{SA}:{SA+15}], v[{KF+4*st}:{KF+4*st+3}], v[{Q0+4*st}:{Q0+4*st+3}], {c}")
            e(f"  ds_read_b128 v[{KF+4*st}:{KF+4*st+3}], v{kreg(st)} offset:{slot+8192}")
        for st in range(8):
            if tv is not None:
                e(f"  s_waitcnt lgkmcnt({min(7+st, 13)})" if st < 7 else "  s_waitcnt lgkmcnt(13)")
            else:
                e(f"  s_waitcnt lgkmcnt({7-st})")
            c = "0" if st == 0 else f"v[{SB}:{SB+15}]"
            e(f"  v_mfma_f32_32x32x16_bf16 v[{SB}:{SB+15}], v[{KF+4*st}:{KF+4*st+3}], v[{Q0+4*st}:{Q0+4*st+3}], {c}")
            if tv is not None:
                vread1(vs, st >> 2, 2*(st & 3)); vread1(vs, st >> 2, 2*(st & 3) + 1)
    elif tv is not None:
        vreads(vs, 0); vreads(vs, 1)
    if tv is not None:
        e("  s_waitcnt lgkmcnt(8)"); pvm(0)
        vreads(vs, 2)
        e("  s_waitcnt lgkmcnt(8)"); pvm(1)
        vreads(vs, 3)
        e("  s_waitcnt lgkmcnt(8)"); pvm(2)
        e("  s_waitcnt lgkmcnt(0)"); pvm(3)
    if PRIO: e("  s_setprio 0")

def valu_phase(lab):
    a = lambda i: f"v{SA+i}"
    b = lambda i: f"v{SB+i}"
    t_ = lambda i: f"v{T0+i}"
    e(f"  v_max3_f32 {t_(0)}, {a(0)}, {a(1)}, {a(2)}")
    e(f"  v_max3_f32 {t_(1)}, {a(3)}, {a(4)}, {a(5)}")
    e(f"  v_max3_f32 {t_(2)}, {a(6)}, {a(7)}, {a(8)}")
    e(f"  v_max3_f32 {t_(3)}, {a(9)}, {a(10)}, {a(11)}")
    e(f"  v_max3_f32 {t_(4)}, {a(12)}, {a(13)}, {a(14)}")
    e(f"  v_max3_f32 {t_(0)}, {t_(0)}, {t_(1)}, {a(15)}")
    e(f"  v_max3_f32 {t_(2)}, {t_(2)}, {t_(3)}, {t_(4)}")
    e(f"  v_max3_f32 {t_(1)}, {b(0)}, {b(1)}, {b(2)}")
    e(f"  v_max3_f32 {t_(3)}, {b(3)}, {b(4)}, {b(5)}")
    e(f"  v_max3_f32 {t_(4)}, {b(6)}, {b(7)}, {b(8)}")
    e(f"  v_max3_f32 {t_(5)}, {b(9)}, {b(10)}, {b(11)}")
    e(f"  v_max3_f32 {t_(6)}, {b(12)}, {b(13)}, {b(14)}")
    e(f"  v_max3_f32 {t_(0)}, {t_(0)}, {t_(2)}, {b(15)}")
    e(f"  v_max3_f32 {t_(1)}, {t_(1)}, {t_(3)}, {t_(4)}")
    e(f"  v_max3_f32 {t_(0)}, {t_(0)}, {t_(5)}, {t_(6)}")
    e(f"  v_max_f32 {t_(0)}, {t_(0)}, {t_(1)}")
    e(f"  v_mov_b32 {t_(1)}, {t_(0)}")
    e(f"  v_add_f32 {t_(2)}, s57, v{VM}")
    e("  s_nop 0")
    e(f"  v_permlane32_swap_b32 {t_(0)}, {t_(1)}")
    e(f"  v_max_f32 {t_(0)}, {t_(0)}, {t_(1)}")
    e(f"  v_mul_f32 {t_(0)}, s41, {t_(0)}")
    e(f"  v_cmp_gt_f32 vcc, {t_(0)}, {t_(2)}")
    e("  s_nop 1")
    e(f"  s_cbranch_vccz L_skip_{lab}")
    e(f"  v_max_f32 {t_(0)}, v{VM}, {t_(0)}")
    e(f"  v_sub_f32 {t_(1)}, v{VM}, {t_(0)}")
    e(f"  v_exp_f32 {t_(1)}, {t_(1)}")
    e(f"  v_mov_b32 v{VM}, {t_(0)}")
    for r in range(64):
        e(f"  v_mul_f32 v{O0+r}, {t_(1)}, v{O0+r}")
    e(f"  v_mul_f32 v{VL}, {t_(1)}, v{VL}")
    e(f"L_skip_{lab}:")
    for i in range(16):
        e(f"  v_fma_f32 {a(i)}, {a(i)}, s41, -v{VM}")
    for i in range(16):
        e(f"  v_exp_f32 {a(i)}, {a(i)}")
    for i in range(16):
        e(f"  v_fma_f32 {b(i)}, {b(i)}, s41, -v{VM}")
    for i in range(16):
        e(f"  v_exp_f32 {b(i)}, {b(i)}")
        if i % 2 == 1:
            j = i - 1
            e(f"  v_add_f32 {t_(j%4)}, {a(j)}, {a(j+1)}")
            e(f"  v_cvt_pk_bf16_f32 v{P0+j//2}, {a(j)}, {a(j+1)}")
            e(f"  v_add_f32 v{VL}, v{VL}, {t_(j%4)}")
    for i in range(0, 16, 2):
        e(f"  v_add_f32 {t_(i%4)}, {b(i)}, {b(i+1)}")
        e(f"  v_cvt_pk_bf16_f32 v{P0+8+i//2}, {b(i)}, {b(i+1)}")
        e(f"  v_add_f32 v{VL}, v{VL}, {t_(i%4)}")

def kernel():
    e(f".globl {NAME}")
    e(".p2align 8")
    e(f".type {NAME},@function")
    e(f"{NAME}:")
    e("  s_cmp_ge_u32 s2, 256")
    e("  s_cbranch_scc1 L_done")
    if DIAG:
        e("  s_memtime s[90:91]")
        e("  s_memrealtime s[92:93]")
    e("  s_load_dwordx4 s[4:7], s[0:1], 0      ; q, k")
    e("  s_load_dwordx2 s[8:9], s[0:1], 16     ; v")
    e("  s_load_dwordx4 s[12:15], s[0:1], 24")
    e("  s_load_dwordx2 s[10:11], s[0:1], 40   ; ws")
    e("  v_lshrrev_b32 v1, 6, v0")
    e("  v_and_b32 v2, 63, v0                  ; lane")
    e("  v_readfirstlane_b32 s20, v1")
    e("  s_nop 3")
    e("  s_and_b32 s21, s20, 3                 ; q tile")
    e("  s_lshr_b32 s22, s20, 2                ; group")
    e("  s_lshr_b32 s58, s2, 2                 ; g")
    e("  s_and_b32 s59, s2, 3                  ; split")
    e("  v_and_b32 v3, 31, v2                  ; l&31")
    e("  v_lshrrev_b32 v4, 5, v2               ; h")
    e("  v_and_b32 v5, 15, v2                  ; i = l&15")
    e("  v_lshrrev_b32 v6, 4, v2               ; g = l>>4")
    e("  s_lshl_b32 s36, s20, 3")
    e("  v_add_u32 v8, s36, v6")
    e("  v_and_b32 v9, 15, v8")
    e("  v_xor_b32 v9, v9, v5")
    e(f"  v_lshlrev_b32 v{DK0}, 8, v8")
    e(f"  v_lshl_add_u32 v{DK0}, v9, 4, v{DK0}")
    e("  v_add_u32 v10, 4, v8")
    e("  v_and_b32 v9, 15, v10")
    e("  v_xor_b32 v9, v9, v5")
    e(f"  v_lshlrev_b32 v{DK1}, 8, v10")
    e(f"  v_lshl_add_u32 v{DK1}, v9, 4, v{DK1}")
    e(f"  v_subrev_u32 v{DK1}, 1024, v{DK1}")
    e("  v_lshlrev_b32 v9, 2, v6")
    e("  v_xor_b32 v9, v9, v5")
    e(f"  v_lshlrev_b32 v{DV}, 8, v8")
    e(f"  v_lshl_add_u32 v{DV}, v9, 4, v{DV}")
    e("  s_lshl_b32 s37, s20, 11")
    e("  s_lshl_b32 s23, s2, 17")
    e("  s_waitcnt lgkmcnt(0)")
    e("  s_lshr_b32 s24, s58, 2")
    e("  s_lshl_b32 s24, s24, 2")
    e("  s_add_u32 s24, s24, 192")
    e("  s_and_b32 s65, s58, 3")
    e("  s_lshl_b32 s65, s65, 3")
    e("  s_add_u32 s60, s14, s24")
    e("  s_addc_u32 s61, s15, 0")
    e("  s_mov_b32 s62, 4")
    e("  s_mov_b32 s63, 0x00020000")
    e("  v_lshlrev_b32 v15, 2, v2")
    e("  s_cmp_lg_u32 s20, 0")
    e("  s_cbranch_scc1 L_noarrive")
    e("  s_lshl_b32 s24, s2, 7")
    e(f"  s_add_u32 s24, s24, {FLAG_OFF}")
    e("  s_add_u32 s16, s10, s24")
    e("  s_addc_u32 s17, s11, 0")
    e("  s_mov_b32 s18, 4")
    e("  s_mov_b32 s19, 0x00020000")
    e("  v_mov_b32 v14, 0")
    e("  buffer_store_dword v14, v15, s[16:19], 0 offen sc1")
    e("L_noarrive:")
    e("  s_add_u32 s28, s6, s23")
    e("  s_addc_u32 s29, s7, 0")
    e("  s_mov_b32 s30, 131072")
    e("  s_mov_b32 s31, 0x00020000")
    dma_k(0)
    e("  s_add_u32 s32, s8, s23")
    e("  s_addc_u32 s33, s9, 0")
    e("  s_mov_b32 s34, 131072")
    e("  s_mov_b32 s35, 0x00020000")
    e("  s_lshl_b32 s23, s58, 2")
    e("  s_add_u32 s23, s23, s21")
    e("  s_lshl_b32 s23, s23, 13")
    e("  s_add_u32 s24, s4, s23")
    e("  s_addc_u32 s25, s5, 0")
    e("  s_mov_b32 s26, 8192")
    e("  s_mov_b32 s27, 0x00020000")
    e("  v_lshlrev_b32 v7, 8, v3")
    e("  v_lshl_add_u32 v7, v4, 4, v7")
    for st in range(8):
        e(f"  buffer_load_dwordx4 v[{Q0+4*st}:{Q0+4*st+3}], v7, s[24:27], 0 offen offset:{32*st}")
    dma_k(1); dma_v(0); dma_k(2); dma_v(1); dma_k(3)
    e("  v_lshlrev_b32 v8, 8, v3")
    for st in range(8):
        e(f"  v_add_u32 v9, {2*st}, v4")
        e("  v_xor_b32 v9, v9, v5")
        e(f"  v_lshl_add_u32 v{KA+st}, v9, 4, v8")
    e("  v_lshrrev_b32 v9, 2, v5")
    e("  v_lshl_add_u32 v10, v4, 2, v9")
    e("  v_lshlrev_b32 v10, 8, v10")
    e("  v_add_u32 v10, 0x14000, v10")
    e("  v_and_b32 v11, 1, v6")
    e("  v_lshl_add_u32 v10, v11, 5, v10")
    e("  v_and_b32 v11, 3, v5")
    e("  v_lshl_add_u32 v10, v11, 3, v10")
    for t in range(4):
        e(f"  v_xor_b32 v11, {t}, v9")
        e(f"  v_lshl_add_u32 v{VA+t}, v11, 6, v10")
    for st in range(8):
        e(f"  v_add_u32 v{KA2[st]}, 0x10000, v{KA+st}")
    for r in range(64):
        e(f"  v_mov_b32 v{O0+r}, 0")
    e(f"  v_mov_b32 v{VM}, 0xff800000")
    e(f"  v_mov_b32 v{VL}, 0")
    e("  s_mov_b32 s41, 0x3e0293ee")
    e("  s_mov_b32 s57, 0x41000000             ; T = 8")
    stamp()
    e("  s_cmp_ge_u32 s22, 1")
    e("  s_cbranch_scc1 L_groupB")
    e("  ; ---- interval 0 (A) ----")
    e("  s_waitcnt vmcnt(10)")
    e("  s_cmp_lg_u32 s20, 0")
    e("  s_cbranch_scc1 L_noarr2")
    e("  s_lshl_b32 s24, 1, s65")
    e("  v_mov_b32 v14, s24")
    e("  buffer_atomic_add v14, v15, s[60:63], 0 offen sc1")
    e("L_noarr2:")
    e("  s_barrier")
    if DIAG: e("  s_memtime s[88:89]")
    stamp()
    dma_k(4); dma_v(2)
    mfma_phase(0, None)
    for j in range(4):
        top(2*j+1); valu_phase(f"a{j}")
        top(2*j+2); mfma_phase(2*j+2 if j < 3 else None, 2*j)
    top(9)
    e("  s_branch L_epi")
    e("L_groupB:")
    nstamp[0] = 1
    top(0)
    top(1); mfma_phase(1, None)
    for j in range(4):
        top(2*j+2); valu_phase(f"b{j}")
        top(2*j+3); mfma_phase(2*j+3 if j < 3 else None, 2*j+1)
    e("L_epi:")
    stamp()
    if DIAG: e("  s_memtime s[98:99]")
    t_ = lambda i: f"v{T0+i}"
    e("  s_cmp_lg_u32 s20, 0")
    e("  s_cbranch_scc1 L_nard")
    e("  buffer_load_dword v104, v15, s[60:63], 0 offen sc1")
    e("L_nard:")
    e(f"  v_mov_b32 {t_(1)}, v{VL}")
    e("  s_nop 7")
    e("  s_nop 7")
    e(f"  v_permlane32_swap_b32 v{VL}, {t_(1)}")
    e(f"  v_add_f32 v{VL}, v{VL}, {t_(1)}")
    e("  s_barrier")
    stamp()
    e("  s_lshl_b32 s43, s20, 14")
    e("  v_lshlrev_b32 v8, 4, v2")
    e("  v_add_u32 v9, s43, v8")
    for qd in range(16):
        e(f"  ds_write_b128 v9, v[{O0+4*qd}:{O0+4*qd+3}] offset:{1024*qd}")
    e("  s_lshl_b32 s43, s20, 9")
    e("  v_lshlrev_b32 v10, 3, v2")
    e("  v_add_u32 v11, s43, v10")
    e(f"  v_add_u32 v11, {XLDS+64}, v11")
    e(f"  v_mov_b32 v12, v{VM}")
    e(f"  v_mov_b32 v13, v{VL}")
    e("  ds_write_b64 v11, v[12:13]")
    e("  s_cmp_lg_u32 s20, 0")
    e("  s_cbranch_scc1 L_nard2")
    e("  s_waitcnt vmcnt(0)")
    e("  v_readfirstlane_b32 s46, v104")
    e("  s_nop 3")
    e("  s_lshr_b32 s46, s46, s65")
    e("  s_and_b32 s46, s46, 0xff")
    if FORCE_ABANDON:
        e("  s_cmp_lg_u32 s59, 1")
    else:
        e("  s_cmp_lg_u32 s46, 4")
    e("  s_cselect_b32 s47, 2, 1")
    e(f"  v_mov_b32 v105, {XLDS}")
    e("  v_mov_b32 v106, s47")
    e("  ds_write_b32 v105, v106")
    e("L_nard2:")
    e("  s_waitcnt lgkmcnt(0)")
    stamp()
    e("  s_barrier")
    stamp()
    e(f"  v_mov_b32 v105, {XLDS}")
    e("  ds_read_b32 v106, v105")
    e("  s_lshl_b32 s43, s20, 11")
    e("  v_add_u32 v9, s43, v8")
    e(f"  v_add_u32 v10, {XLDS+64}, v10")
    e("  s_lshl_b32 s46, s2, 15")
    e("  s_add_u32 s48, s10, s46")
    e("  s_addc_u32 s49, s11, 0")
    e("  s_mov_b32 s50, 32768")
    e("  s_mov_b32 s51, 0x00020000")
    e("  s_lshl_b32 s40, s20, 10               ; w*1024")
    e("  s_waitcnt lgkmcnt(0)")
    e("  v_readfirstlane_b32 s47, v106")
    def rd(j):
        rb = 16 + 16*j; mb = 80 + 4*j
        e(f"  ds_read_b64 v[{mb}:{mb+1}], v10 offset:{j*512}")
        e(f"  ds_read_b64 v[{mb+2}:{mb+3}], v10 offset:{(j+4)*512}")
        e(f"  v_add_u32 v14, {j*16384}, v9")
        e(f"  ds_read_b128 v[{rb}:{rb+3}], v14")
        e(f"  ds_read_b128 v[{rb+4}:{rb+7}], v14 offset:1024")
        e(f"  v_add_u32 v14, {(j+4)*16384}, v9")
        e(f"  ds_read_b128 v[{rb+8}:{rb+11}], v14")
        e(f"  ds_read_b128 v[{rb+12}:{rb+15}], v14 offset:1024")
    rd(0); rd(1)
    for j in range(4):
        rb = 16 + 16*j; mb = 80 + 4*j
        e(f"  s_waitcnt lgkmcnt({6 if j < 3 else 0})")
        if j + 2 < 4: rd(j + 2)
        e(f"  v_max_f32 v100, v{mb}, v{mb+2}")
        e(f"  v_sub_f32 v101, v{mb}, v100")
        e(f"  v_sub_f32 v102, v{mb+2}, v100")
        e("  v_exp_f32 v101, v101")
        e("  v_exp_f32 v102, v102")
        e("  s_nop 0")
        e(f"  v_mul_f32 v103, v101, v{mb+1}")
        e(f"  v_fma_f32 v{mb+1}, v102, v{mb+3}, v103     ; L")
        e(f"  v_mov_b32 v{mb}, v100                       ; M")
        for r in range(8):
            e(f"  v_mul_f32 v{rb+r}, v101, v{rb+r}")
            e(f"  v_fma_f32 v{rb+r}, v102, v{rb+8+r}, v{rb+r}")
        for r in range(4):
            e(f"  v_cvt_pk_bf16_f32 v{rb+8+r}, v{rb+2*r}, v{rb+2*r+1}")
        e(f"  s_cmp_lg_u32 s59, {j}")
        e(f"  s_cbranch_scc1 L_st{j}")
        for r in range(8):
            e(f"  v_mov_b32 v{108+r}, v{rb+r}")
        e(f"  v_mov_b32 v116, v{mb}")
        e(f"  v_mov_b32 v117, v{mb+1}")
        e("  s_cmp_eq_u32 s47, 1")
        e(f"  s_cbranch_scc1 L_nost{j}")
        e(f"L_st{j}:")
        e(f"  s_add_u32 s46, s40, {j*8192}")
        e(f"  buffer_store_dwordx4 v[{rb+8}:{rb+11}], v8, s[48:51], s46 offen {PPOL}")
        e(f"L_nost{j}:")
    e("  s_cmp_lg_u32 s20, 0")
    e("  s_cbranch_scc1 L_noml")
    e("  s_lshl_b32 s46, s2, 10")
    e(f"  s_add_u32 s46, s46, {ML_OFF}")
    e("  s_add_u32 s52, s10, s46")
    e("  s_addc_u32 s53, s11, 0")
    e("  v_lshlrev_b32 v14, 3, v2")
    e("  s_mov_b32 s55, 0x00020000")
    e("  s_mov_b32 s54, 1024")
    e("  v_cmp_gt_u32 vcc, 32, v2")
    e("  s_and_saveexec_b64 s[44:45], vcc")
    for j in range(4):
        mb = 80 + 4*j
        e(f"  buffer_store_dwordx2 v[{mb}:{mb+1}], v14, s[52:55], 0 offen offset:{j*256} {PPOL}")
    e("  s_mov_b64 exec, s[44:45]")
    e("L_noml:")
    stamp()
    e("  s_waitcnt vmcnt(0)")
    stamp()
    e("  s_barrier")
    stamp()
    e("  s_cmp_lg_u32 s20, 0")
    e("  s_cbranch_scc1 L_w_notzero")
    e("  v_mov_b32 v104, s47")
    e("  buffer_store_dword v104, v15, s[16:19], 0 offen sc1")
    e("  s_cmp_eq_u32 s47, 2")
    e("  s_cbranch_scc1 L_w_notzero")
    e("  s_lshl_b32 s24, s58, 9")
    e(f"  s_add_u32 s24, s24, {FLAG_OFF}")
    e("  s_add_u32 s16, s10, s24")
    e("  s_addc_u32 s17, s11, 0")
    e("  s_mov_b32 s18, 512")
    e("  v_lshlrev_b32 v105, 7, v2")
    e("L_poll:")
    e("  buffer_load_dword v104, v105, s[16:19], 0 offen sc1")
    e("  s_waitcnt vmcnt(0)")
    e("  v_readlane_b32 s24, v104, 0")
    e("  v_readlane_b32 s25, v104, 1")
    e("  v_readlane_b32 s26, v104, 2")
    e("  v_readlane_b32 s27, v104, 3")
    e("  s_nop 3")
    e("  s_min_u32 s44, s24, s25")
    e("  s_min_u32 s45, s26, s27")
    e("  s_min_u32 s44, s44, s45")
    e("  s_cmp_eq_u32 s44, 0")
    e("  s_cbranch_scc0 L_polldone")
    e("  s_sleep 1")
    e("  s_branch L_poll")
    e("L_polldone:")
    e("  s_mov_b32 s44, 0")
    e("  s_mov_b32 s45, 0")
    for sp, r in enumerate(("s24", "s25", "s26", "s27")):
        e(f"  s_cmp_eq_u32 {r}, 2")
        e(f"  s_cselect_b32 s46, {1 << sp}, 0")
        e(f"  s_cselect_b32 s42, 0, {1 << sp}")
        e("  s_or_b32 s44, s44, s46")
        e("  s_or_b32 s45, s45, s42")
    e("  s_ff1_i32_b32 s46, s45")
    e("  s_cmp_eq_u32 s46, s59")
    e("  s_cselect_b32 s42, s44, 0")
    e(f"  v_mov_b32 v105, {XLDS+4}")
    e("  v_mov_b32 v106, s42")
    e("  ds_write_b32 v105, v106")
    e("  s_waitcnt lgkmcnt(0)")
    e("L_w_notzero:")
    e("  s_barrier")
    e("  s_cmp_eq_u32 s47, 2")
    e("  s_cbranch_scc1 L_done")
    stamp()
    e("  s_lshl_b32 s46, s58, 17")
    e("  s_add_u32 s48, s10, s46")
    e("  s_addc_u32 s49, s11, 0")
    e("  s_mov_b32 s50, 131072")
    e("  s_lshl_b32 s46, s58, 12")
    e(f"  s_add_u32 s46, s46, {ML_OFF}")
    e("  s_add_u32 s52, s10, s46")
    e("  s_addc_u32 s53, s11, 0")
    e("  s_mov_b32 s54, 4096")
    e("  s_mov_b32 s55, 0x00020000")
    e("  v_and_b32 v20, 31, v2")
    e("  v_lshlrev_b32 v20, 3, v20")
    e("  s_lshl_b32 s44, s59, 8                 ; j*256")
    e("  s_lshl_b32 s45, s59, 13")
    e("  s_add_u32 s45, s45, s40                ; j*8192 + w*1024")
    for k in range(1, 4):
        e(f"  s_add_u32 s46, s59, {k}")
        e("  s_and_b32 s46, s46, 3")
        e("  s_lshl_b32 s24, s46, 10")
        e("  s_add_u32 s24, s24, s44")
        e(f"  buffer_load_dwordx2 v[{22+2*k}:{23+2*k}], v20, s[52:55], s24 offen {LPOL}")
        e("  s_lshl_b32 s24, s46, 15")
        e("  s_add_u32 s24, s24, s45")
        e(f"  buffer_load_dwordx4 v[{28+4*k}:{31+4*k}], v8, s[48:51], s24 offen {LPOL}")
    e(f"  v_mov_b32 v105, {XLDS+4}")
    e("  ds_read_b32 v106, v105")
    e("  v_lshrrev_b32 v6, 5, v2")
    e("  v_and_b32 v7, 31, v2")
    e("  v_lshlrev_b32 v7, 8, v7")
    e("  v_lshl_add_u32 v7, v6, 4, v7")
    e("  s_lshl_b32 s46, s20, 5")
    e("  v_add_u32 v7, s46, v7")
    e("  s_mov_b32 s61, 0xffff0000")
    e("  s_waitcnt lgkmcnt(0)")
    e("  v_readfirstlane_b32 s42, v106")
    def fin(ms, ls, first_fp32, srcs, jreg):
        e(f"  v_max_f32 v16, v{ms[0]}, v{ms[1]}")
        e(f"  v_max3_f32 v16, v16, v{ms[2]}, v{ms[3]}")
        for m in ms: e(f"  v_sub_f32 v{m}, v{m}, v16")
        for m in ms: e(f"  v_exp_f32 v{m}, v{m}")
        e("  s_nop 0")
        e(f"  v_mul_f32 v17, v{ms[0]}, v{ls[0]}")
        for i in range(1, 4): e(f"  v_fma_f32 v17, v{ms[i]}, v{ls[i]}, v17")
        e("  v_rcp_f32 v17, v17")
        e("  s_nop 0")
        for m in ms: e(f"  v_mul_f32 v{m}, v{m}, v17")
        if first_fp32:
            for r in range(8): e(f"  v_mul_f32 v{108+r}, v{ms[0]}, v{108+r}")
        for idx, (mi, src) in enumerate(srcs):
            for d in range(4):
                e(f"  v_lshlrev_b32 v18, 16, v{src+d}")
                e(f"  v_and_b32 v19, s61, v{src+d}")
                if idx == 0 and not first_fp32:
                    e(f"  v_mul_f32 v{108+2*d}, v{mi}, v18")
                    e(f"  v_mul_f32 v{109+2*d}, v{mi}, v19")
                else:
                    e(f"  v_fma_f32 v{108+2*d}, v{mi}, v18, v{108+2*d}")
                    e(f"  v_fma_f32 v{109+2*d}, v{mi}, v19, v{109+2*d}")
        for jj in range(4):
            e(f"  v_cvt_pk_bf16_f32 v{64+jj}, v{108+2*jj}, v{109+2*jj}")
        e("  s_nop 1")
        e("  v_permlane32_swap_b32 v64, v66")
        e("  v_permlane32_swap_b32 v65, v67")
        e("  s_lshl_b32 s46, s58, 2")
        e(f"  s_add_u32 s46, s46, {jreg}")
        e("  s_lshl_b32 s46, s46, 13")
        e("  s_add_u32 s28, s12, s46")
        e("  s_addc_u32 s29, s13, 0")
        e("  s_mov_b32 s30, 8192")
        e("  s_mov_b32 s31, 0x00020000")
        e("  buffer_store_dwordx4 v[64:67], v7, s[28:31], 0 offen")
    e("  s_waitcnt vmcnt(0)")
    fin([116, 24, 26, 28], [117, 25, 27, 29], True, [(24, 32), (26, 36), (28, 40)], "s59")
    e("L_finloop:")
    e("  s_cmp_eq_u32 s42, 0")
    e("  s_cbranch_scc1 L_finend")
    e("  s_ff1_i32_b32 s44, s42                ; j")
    e("  s_lshl_b32 s45, 1, s44")
    e("  s_andn2_b32 s42, s42, s45")
    e("  s_lshl_b32 s45, s44, 8")
    for sp in range(4):
        e(f"  buffer_load_dwordx2 v[{24+2*sp}:{25+2*sp}], v20, s[52:55], s45 offen offset:{1024*sp} {LPOL}")
    e("  s_lshl_b32 s45, s44, 13")
    e("  s_add_u32 s45, s45, s40")
    for sp in range(4):
        e(f"  buffer_load_dwordx4 v[{32+4*sp}:{35+4*sp}], v8, s[48:51], s45 offen {LPOL}")
        if sp < 3: e("  s_add_u32 s45, s45, 32768")
    e("  s_waitcnt vmcnt(0)")
    fin([24, 26, 28, 30], [25, 27, 29, 31], False, [(24, 32), (26, 36), (28, 40), (30, 44)], "s44")
    e("  s_branch L_finloop")
    e("L_finend:")
    if DIAG:
        e("  s_waitcnt vmcnt(0)")
        e("  s_memtime s[94:95]")
        e("  s_memrealtime s[96:97]")
        e("  s_waitcnt lgkmcnt(0)")
        e("  s_sub_u32 s94, s94, s90")
        e("  s_sub_u32 s96, s96, s92")
        e("  s_cmp_lg_u32 s20, 0")
        e("  s_cbranch_scc1 L_done")
        e("  s_cmp_ge_u32 s2, 4")
        e("  s_cbranch_scc1 L_done")
        e("  s_sub_u32 s98, s98, s90")
        e("  s_sub_u32 s88, s88, s90")
        e("  s_lshl_b32 s46, s2, 4")
        e("  s_add_u32 s48, s14, s46")
        e("  s_addc_u32 s49, s15, 0")
        e("  s_mov_b32 s50, 16")
        e("  s_mov_b32 s51, 0x00020000")
        e("  v_mov_b32 v4, s88")
        e("  v_mov_b32 v5, s98")
        e("  v_mov_b32 v6, s94")
        e("  v_mov_b32 v7, s96")
        e("  v_lshlrev_b32 v3, 4, v2")
        e("  buffer_store_dwordx4 v[4:7], v3, s[48:51], 0 offen")
    if STAMP:
        e("  s_waitcnt vmcnt(0)")
        stamp()
        e("  s_waitcnt lgkmcnt(0)")
        e("  s_lshl_b32 s46, s2, 3")
        e("  s_add_u32 s46, s46, s20")
        e("  s_lshl_b32 s46, s46, 8")
        e("  s_add_u32 s46, s46, 0x2000000")
        e("  s_add_u32 s48, s10, s46")
        e("  s_addc_u32 s49, s11, 0")
        e("  s_mov_b32 s50, 256")
        e("  s_mov_b32 s51, 0x00020000")
        e("  v_mov_b32 v3, 0")
        for i_ in range(nstamp[0]):
            e(f"  v_mov_b32 v4, s{66+2*i_}")
            e(f"  v_mov_b32 v5, s{67+2*i_}")
            e(f"  buffer_store_dwordx2 v[4:5], v3, s[48:51], 0 offen offset:{8*i_}")
    e("L_done:")
    e("  s_endpgm")

e(HEADER.rstrip())
e(f"; @launch grid=(256,1,1) block=(512,1,1) lds=163840")
e('.amdgcn_target "amdgcn-amd-amdhsa--gfx950"')
e(".text")
kernel()
e('.section .rodata,"a"')
e(".p2align 6")
e(f".amdhsa_kernel {NAME}")
e("  .amdhsa_next_free_vgpr 256")
e(f"  .amdhsa_next_free_sgpr {102 if (STAMP or DIAG) else 72}")
e("  .amdhsa_accum_offset 256")
e("  .amdhsa_group_segment_fixed_size 0")
e("  .amdhsa_kernarg_size 48")
e("  .amdhsa_user_sgpr_count 2")
e("  .amdhsa_user_sgpr_kernarg_segment_ptr 1")
e("  .amdhsa_system_sgpr_workgroup_id_x 1")
e(".end_amdhsa_kernel")
open(sys.argv[1] if len(sys.argv) > 1 else "standalone__gqa_softmax__sampling.s", "w").write("\n".join(out) + "\n")
```

```python
import sys, os
POL = os.environ.get("POL", "nt")
PPOL = os.environ.get("PPOL", "sc1")
LPOL = os.environ.get("LPOL", "sc1")
STAMP = int(os.environ.get("STAMP", "0"))
DIAG = int(os.environ.get("DIAG", "0"))
PRIO = int(os.environ.get("PRIO", "1"))
FORCE_ABANDON = int(os.environ.get("FORCE_ABANDON", "0"))
nstamp = [0]
def stamp():
    if STAMP:
        i = nstamp[0]; nstamp[0] += 1
        e(f"  s_memtime s[{60+6+2*i}:{60+7+2*i}]")

HEADER = """; Kernarg layout for this problem (48 bytes, ptrs only, base s[0:1]):
"""
out = []
def e(s=""):
    out.append(s)

Q0 = 16; KF = 48; VF = 80; SA = 112; SB = 128; P0 = 144; O0 = 160
KA2 = [3, 4, 5, 6, 7, 9, 10, 11]
KA = 224; VA = 232; DK0, DK1, DV = 236, 237, 238
VM, VL = 239, 240
T0 = 241
ML_OFF = 16 * 1024 * 1024
FLAG_OFF = 17 * 1024 * 1024
XLDS = 131072
NAME = "standalone__gqa_softmax__sampling_kernel"

def dma_k(t):
    e(f"  s_add_u32 s38, s37, {(t%5)*16384}")
    e("  s_mov_b32 m0, s38")
    e(f"  s_mov_b32 s39, {t*16384}")
    e(f"  buffer_load_dwordx4 v{DK0}, s[28:31], s39 offen {POL} lds")
    e(f"  buffer_load_dwordx4 v{DK1}, s[28:31], s39 offen offset:1024 {POL} lds")
def dma_v(t):
    e(f"  s_add_u32 s38, s37, {81920+(t%5)*16384}")
    e("  s_mov_b32 m0, s38")
    e(f"  s_mov_b32 s39, {t*16384}")
    e(f"  buffer_load_dwordx4 v{DV}, s[32:35], s39 offen {POL} lds")
    e(f"  buffer_load_dwordx4 v{DV}, s[32:35], s39 offen offset:1024 {POL} lds")

WAITS = {0: 10, 5: 10, 6: 8, 7: 4, 8: 2, 9: 0}
def top(i):
    n = WAITS.get(i, 12)
    e(f"  ; ---- interval {i} ----")
    e(f"  s_waitcnt vmcnt({n})")
    e("  s_barrier")
    if i in (0, 1, 9): stamp()
    if i + 4 <= 7: dma_k(i + 4)
    if i + 2 <= 7: dma_v(i + 2)

def vread1(slot, s, idx):
    t, ee = idx >> 1, idx & 1
    bb = VF + (s & 1)*16 + t*4 + 2*ee
    base = VA
    if slot >= 65536:
        base = T0 + 0; slot -= 65536
    e(f"  ds_read_b64_tr_b16 v[{bb}:{bb+1}], v{base+t} offset:{slot+(16*s+8*ee)*256}")
def vreads(slot, s):
    for idx in range(8): vread1(slot, s, idx)
def pvm(s):
    for t in range(4):
        bb = VF + (s & 1)*16 + t*4
        e(f"  v_mfma_f32_32x32x16_bf16 v[{O0+16*t}:{O0+16*t+15}], v[{bb}:{bb+3}], v[{P0+4*s}:{P0+4*s+3}], v[{O0+16*t}:{O0+16*t+15}]")

def mfma_phase(tk, tv):
    if PRIO: e("  s_setprio 1")
    vs = None if tv is None else (tv % 5) * 16384
    if vs is not None and vs >= 65536:
        for t in range(4): e(f"  v_add_u32 v{T0+t}, 0x10000, v{VA+t}")
    if tk is not None:
        slot = (tk % 5) * 16384
        kreg = lambda st: KA + st
        if slot >= 65536:
            slot -= 65536
            kreg = lambda st: KA2[st]
        for st in range(8):
            e(f"  ds_read_b128 v[{KF+4*st}:{KF+4*st+3}], v{kreg(st)} offset:{slot}")
        for st in range(8):
            e("  s_waitcnt lgkmcnt(7)")
            c = "0" if st == 0 else f"v[{SA}:{SA+15}]"
            e(f"  v_mfma_f32_32x32x16_bf16 v[{SA}:{SA+15}], v[{KF+4*st}:{KF+4*st+3}], v[{Q0+4*st}:{Q0+4*st+3}], {c}")
            e(f"  ds_read_b128 v[{KF+4*st}:{KF+4*st+3}], v{kreg(st)} offset:{slot+8192}")
        for st in range(8):
            if tv is not None:
                e(f"  s_waitcnt lgkmcnt({min(7+st, 13)})" if st < 7 else "  s_waitcnt lgkmcnt(13)")
            else:
                e(f"  s_waitcnt lgkmcnt({7-st})")
            c = "0" if st == 0 else f"v[{SB}:{SB+15}]"
            e(f"  v_mfma_f32_32x32x16_bf16 v[{SB}:{SB+15}], v[{KF+4*st}:{KF+4*st+3}], v[{Q0+4*st}:{Q0+4*st+3}], {c}")
            if tv is not None:
                vread1(vs, st >> 2, 2*(st & 3)); vread1(vs, st >> 2, 2*(st & 3) + 1)
    elif tv is not None:
        vreads(vs, 0); vreads(vs, 1)
    if tv is not None:
        e("  s_waitcnt lgkmcnt(8)"); pvm(0)
        vreads(vs, 2)
        e("  s_waitcnt lgkmcnt(8)"); pvm(1)
        vreads(vs, 3)
        e("  s_waitcnt lgkmcnt(8)"); pvm(2)
        e("  s_waitcnt lgkmcnt(0)"); pvm(3)
    if PRIO: e("  s_setprio 0")

def valu_phase(lab):
    a = lambda i: f"v{SA+i}"
    b = lambda i: f"v{SB+i}"
    t_ = lambda i: f"v{T0+i}"
    e(f"  v_max3_f32 {t_(0)}, {a(0)}, {a(1)}, {a(2)}")
    e(f"  v_max3_f32 {t_(1)}, {a(3)}, {a(4)}, {a(5)}")
    e(f"  v_max3_f32 {t_(2)}, {a(6)}, {a(7)}, {a(8)}")
    e(f"  v_max3_f32 {t_(3)}, {a(9)}, {a(10)}, {a(11)}")
    e(f"  v_max3_f32 {t_(4)}, {a(12)}, {a(13)}, {a(14)}")
    e(f"  v_max3_f32 {t_(0)}, {t_(0)}, {t_(1)}, {a(15)}")
    e(f"  v_max3_f32 {t_(2)}, {t_(2)}, {t_(3)}, {t_(4)}")
    e(f"  v_max3_f32 {t_(1)}, {b(0)}, {b(1)}, {b(2)}")
    e(f"  v_max3_f32 {t_(3)}, {b(3)}, {b(4)}, {b(5)}")
    e(f"  v_max3_f32 {t_(4)}, {b(6)}, {b(7)}, {b(8)}")
    e(f"  v_max3_f32 {t_(5)}, {b(9)}, {b(10)}, {b(11)}")
    e(f"  v_max3_f32 {t_(6)}, {b(12)}, {b(13)}, {b(14)}")
    e(f"  v_max3_f32 {t_(0)}, {t_(0)}, {t_(2)}, {b(15)}")
    e(f"  v_max3_f32 {t_(1)}, {t_(1)}, {t_(3)}, {t_(4)}")
    e(f"  v_max3_f32 {t_(0)}, {t_(0)}, {t_(5)}, {t_(6)}")
    e(f"  v_max_f32 {t_(0)}, {t_(0)}, {t_(1)}")
    e(f"  v_mov_b32 {t_(1)}, {t_(0)}")
    e(f"  v_add_f32 {t_(2)}, s57, v{VM}")
    e("  s_nop 0")
    e(f"  v_permlane32_swap_b32 {t_(0)}, {t_(1)}")
    e(f"  v_max_f32 {t_(0)}, {t_(0)}, {t_(1)}")
    e(f"  v_mul_f32 {t_(0)}, s41, {t_(0)}")
    e(f"  v_cmp_gt_f32 vcc, {t_(0)}, {t_(2)}")
    e("  s_nop 1")
    e(f"  s_cbranch_vccz L_skip_{lab}")
    e(f"  v_max_f32 {t_(0)}, v{VM}, {t_(0)}")
    e(f"  v_sub_f32 {t_(1)}, v{VM}, {t_(0)}")
    e(f"  v_exp_f32 {t_(1)}, {t_(1)}")
    e(f"  v_mov_b32 v{VM}, {t_(0)}")
    for r in range(64):
        e(f"  v_mul_f32 v{O0+r}, {t_(1)}, v{O0+r}")
    e(f"  v_mul_f32 v{VL}, {t_(1)}, v{VL}")
    e(f"L_skip_{lab}:")
    for i in range(16):
        e(f"  v_fma_f32 {a(i)}, {a(i)}, s41, -v{VM}")
    for i in range(16):
        e(f"  v_exp_f32 {a(i)}, {a(i)}")
    for i in range(16):
        e(f"  v_fma_f32 {b(i)}, {b(i)}, s41, -v{VM}")
    for i in range(16):
        e(f"  v_exp_f32 {b(i)}, {b(i)}")
        if i % 2 == 1:
            j = i - 1
            e(f"  v_add_f32 {t_(j%4)}, {a(j)}, {a(j+1)}")
            e(f"  v_cvt_pk_bf16_f32 v{P0+j//2}, {a(j)}, {a(j+1)}")
            e(f"  v_add_f32 v{VL}, v{VL}, {t_(j%4)}")
    for i in range(0, 16, 2):
        e(f"  v_add_f32 {t_(i%4)}, {b(i)}, {b(i+1)}")
        e(f"  v_cvt_pk_bf16_f32 v{P0+8+i//2}, {b(i)}, {b(i+1)}")
        e(f"  v_add_f32 v{VL}, v{VL}, {t_(i%4)}")

def kernel():
    e(f".globl {NAME}")
    e(".p2align 8")
    e(f".type {NAME},@function")
    e(f"{NAME}:")
    e("  s_cmp_ge_u32 s2, 256")
    e("  s_cbranch_scc1 L_done")
    if DIAG:
        e("  s_memtime s[90:91]")
        e("  s_memrealtime s[92:93]")
    e("  s_load_dwordx4 s[4:7], s[0:1], 0      ; q, k")
    e("  s_load_dwordx2 s[8:9], s[0:1], 16     ; v")
    e("  s_load_dwordx4 s[12:15], s[0:1], 24")
    e("  s_load_dwordx2 s[10:11], s[0:1], 40   ; ws")
    e("  v_lshrrev_b32 v1, 6, v0")
    e("  v_and_b32 v2, 63, v0                  ; lane")
    e("  v_readfirstlane_b32 s20, v1")
    e("  s_nop 3")
    e("  s_and_b32 s21, s20, 3                 ; q tile")
    e("  s_lshr_b32 s22, s20, 2                ; group")
    e("  s_lshr_b32 s58, s2, 2                 ; g")
    e("  s_and_b32 s59, s2, 3                  ; split")
    e("  v_and_b32 v3, 31, v2                  ; l&31")
    e("  v_lshrrev_b32 v4, 5, v2               ; h")
    e("  v_and_b32 v5, 15, v2                  ; i = l&15")
    e("  v_lshrrev_b32 v6, 4, v2               ; g = l>>4")
    e("  s_lshl_b32 s36, s20, 3")
    e("  v_add_u32 v8, s36, v6")
    e("  v_and_b32 v9, 15, v8")
    e("  v_xor_b32 v9, v9, v5")
    e(f"  v_lshlrev_b32 v{DK0}, 8, v8")
    e(f"  v_lshl_add_u32 v{DK0}, v9, 4, v{DK0}")
    e("  v_add_u32 v10, 4, v8")
    e("  v_and_b32 v9, 15, v10")
    e("  v_xor_b32 v9, v9, v5")
    e(f"  v_lshlrev_b32 v{DK1}, 8, v10")
    e(f"  v_lshl_add_u32 v{DK1}, v9, 4, v{DK1}")
    e(f"  v_subrev_u32 v{DK1}, 1024, v{DK1}")
    e("  v_lshlrev_b32 v9, 2, v6")
    e("  v_xor_b32 v9, v9, v5")
    e(f"  v_lshlrev_b32 v{DV}, 8, v8")
    e(f"  v_lshl_add_u32 v{DV}, v9, 4, v{DV}")
    e("  s_lshl_b32 s37, s20, 11")
    e("  s_lshl_b32 s23, s2, 17")
    e("  s_waitcnt lgkmcnt(0)")
    if DIAG: e("  s_memtime s[86:87]")
    e("  s_lshr_b32 s24, s58, 2")
    e("  s_lshl_b32 s24, s24, 2")
    e("  s_add_u32 s24, s24, 192")
    e("  s_and_b32 s65, s58, 3")
    e("  s_lshl_b32 s65, s65, 3")
    e("  s_add_u32 s60, s14, s24")
    e("  s_addc_u32 s61, s15, 0")
    e("  s_mov_b32 s62, 4")
    e("  s_mov_b32 s63, 0x00020000")
    e("  v_lshlrev_b32 v15, 2, v2")
    e("  s_cmp_lg_u32 s20, 0")
    e("  s_cbranch_scc1 L_noarrive")
    e("  s_lshl_b32 s24, s2, 7")
    e(f"  s_add_u32 s24, s24, {FLAG_OFF}")
    e("  s_add_u32 s16, s10, s24")
    e("  s_addc_u32 s17, s11, 0")
    e("  s_mov_b32 s18, 4")
    e("  s_mov_b32 s19, 0x00020000")
    e("  v_mov_b32 v14, 0")
    e("  buffer_store_dword v14, v15, s[16:19], 0 offen sc1")
    e("L_noarrive:")
    e("  s_add_u32 s28, s6, s23")
    e("  s_addc_u32 s29, s7, 0")
    e("  s_mov_b32 s30, 131072")
    e("  s_mov_b32 s31, 0x00020000")
    dma_k(0)
    e("  s_add_u32 s32, s8, s23")
    e("  s_addc_u32 s33, s9, 0")
    e("  s_mov_b32 s34, 131072")
    e("  s_mov_b32 s35, 0x00020000")
    e("  s_lshl_b32 s23, s58, 2")
    e("  s_add_u32 s23, s23, s21")
    e("  s_lshl_b32 s23, s23, 13")
    e("  s_add_u32 s24, s4, s23")
    e("  s_addc_u32 s25, s5, 0")
    e("  s_mov_b32 s26, 8192")
    e("  s_mov_b32 s27, 0x00020000")
    e("  v_lshlrev_b32 v7, 8, v3")
    e("  v_lshl_add_u32 v7, v4, 4, v7")
    for st in range(8):
        e(f"  buffer_load_dwordx4 v[{Q0+4*st}:{Q0+4*st+3}], v7, s[24:27], 0 offen offset:{32*st}")
    dma_k(1); dma_v(0); dma_k(2); dma_v(1); dma_k(3)
    if DIAG: e("  s_memtime s[84:85]")
    e("  v_lshlrev_b32 v8, 8, v3")
    for st in range(8):
        e(f"  v_add_u32 v9, {2*st}, v4")
        e("  v_xor_b32 v9, v9, v5")
        e(f"  v_lshl_add_u32 v{KA+st}, v9, 4, v8")
    e("  v_lshrrev_b32 v9, 2, v5")
    e("  v_lshl_add_u32 v10, v4, 2, v9")
    e("  v_lshlrev_b32 v10, 8, v10")
    e("  v_add_u32 v10, 0x14000, v10")
    e("  v_and_b32 v11, 1, v6")
    e("  v_lshl_add_u32 v10, v11, 5, v10")
    e("  v_and_b32 v11, 3, v5")
    e("  v_lshl_add_u32 v10, v11, 3, v10")
    for t in range(4):
        e(f"  v_xor_b32 v11, {t}, v9")
        e(f"  v_lshl_add_u32 v{VA+t}, v11, 6, v10")
    for st in range(8):
        e(f"  v_add_u32 v{KA2[st]}, 0x10000, v{KA+st}")
    for r in range(64):
        e(f"  v_mov_b32 v{O0+r}, 0")
    e(f"  v_mov_b32 v{VM}, 0xff800000")
    e(f"  v_mov_b32 v{VL}, 0")
    e("  s_mov_b32 s41, 0x3e0293ee")
    e("  s_mov_b32 s57, 0x41000000             ; T = 8")
    stamp()
    e("  s_cmp_ge_u32 s22, 1")
    e("  s_cbranch_scc1 L_groupB")
    e("  ; ---- interval 0 (A) ----")
    e("  s_waitcnt vmcnt(10)")
    e("  s_cmp_lg_u32 s20, 0")
    e("  s_cbranch_scc1 L_noarr2")
    e("  s_lshl_b32 s24, 1, s65")
    e("  v_mov_b32 v14, s24")
    e("  buffer_atomic_add v14, v15, s[60:63], 0 offen sc1")
    e("L_noarr2:")
    e("  s_barrier")
    if DIAG: e("  s_memtime s[88:89]")
    stamp()
    dma_k(4); dma_v(2)
    mfma_phase(0, None)
    for j in range(4):
        top(2*j+1); valu_phase(f"a{j}")
        top(2*j+2); mfma_phase(2*j+2 if j < 3 else None, 2*j)
    top(9)
    e("  s_branch L_epi")
    e("L_groupB:")
    nstamp[0] = 1
    top(0)
    top(1); mfma_phase(1, None)
    for j in range(4):
        top(2*j+2); valu_phase(f"b{j}")
        top(2*j+3); mfma_phase(2*j+3 if j < 3 else None, 2*j+1)
    e("L_epi:")
    stamp()
    if DIAG: e("  s_memtime s[98:99]")
    t_ = lambda i: f"v{T0+i}"
    e("  s_cmp_lg_u32 s20, 0")
    e("  s_cbranch_scc1 L_nard")
    e("  buffer_load_dword v104, v15, s[60:63], 0 offen sc1")
    e("L_nard:")
    e(f"  v_mov_b32 {t_(1)}, v{VL}")
    e("  s_nop 7")
    e("  s_nop 7")
    e(f"  v_permlane32_swap_b32 v{VL}, {t_(1)}")
    e(f"  v_add_f32 v{VL}, v{VL}, {t_(1)}")
    e("  s_barrier")
    stamp()
    e("  s_lshl_b32 s43, s20, 14")
    e("  v_lshlrev_b32 v8, 4, v2")
    e("  v_add_u32 v9, s43, v8")
    for qd in range(16):
        e(f"  ds_write_b128 v9, v[{O0+4*qd}:{O0+4*qd+3}] offset:{1024*qd}")
    e("  s_lshl_b32 s43, s20, 9")
    e("  v_lshlrev_b32 v10, 3, v2")
    e("  v_add_u32 v11, s43, v10")
    e(f"  v_add_u32 v11, {XLDS+64}, v11")
    e(f"  v_mov_b32 v12, v{VM}")
    e(f"  v_mov_b32 v13, v{VL}")
    e("  ds_write_b64 v11, v[12:13]")
    e("  s_cmp_lg_u32 s20, 0")
    e("  s_cbranch_scc1 L_nard2")
    e("  s_waitcnt vmcnt(0)")
    e("  v_readfirstlane_b32 s46, v104")
    e("  s_nop 3")
    e("  s_lshr_b32 s46, s46, s65")
    e("  s_and_b32 s46, s46, 0xff")
    if FORCE_ABANDON:
        e("  s_cmp_lg_u32 s59, 1")
    else:
        e("  s_cmp_lg_u32 s46, 4")
    e("  s_cselect_b32 s47, 2, 1")
    e(f"  v_mov_b32 v105, {XLDS}")
    e("  v_mov_b32 v106, s47")
    e("  ds_write_b32 v105, v106")
    e("L_nard2:")
    e("  s_waitcnt lgkmcnt(0)")
    stamp()
    e("  s_barrier")
    stamp()
    e(f"  v_mov_b32 v105, {XLDS}")
    e("  ds_read_b32 v106, v105")
    e("  s_lshl_b32 s43, s20, 11")
    e("  v_add_u32 v9, s43, v8")
    e(f"  v_add_u32 v10, {XLDS+64}, v10")
    e("  s_lshl_b32 s46, s2, 15")
    e("  s_add_u32 s48, s10, s46")
    e("  s_addc_u32 s49, s11, 0")
    e("  s_mov_b32 s50, 32768")
    e("  s_mov_b32 s51, 0x00020000")
    e("  s_lshl_b32 s40, s20, 10               ; w*1024")
    e("  s_waitcnt lgkmcnt(0)")
    e("  v_readfirstlane_b32 s47, v106")
    def rd(j):
        rb = 16 + 16*j; mb = 80 + 4*j
        e(f"  ds_read_b64 v[{mb}:{mb+1}], v10 offset:{j*512}")
        e(f"  ds_read_b64 v[{mb+2}:{mb+3}], v10 offset:{(j+4)*512}")
        e(f"  v_add_u32 v14, {j*16384}, v9")
        e(f"  ds_read_b128 v[{rb}:{rb+3}], v14")
        e(f"  ds_read_b128 v[{rb+4}:{rb+7}], v14 offset:1024")
        e(f"  v_add_u32 v14, {(j+4)*16384}, v9")
        e(f"  ds_read_b128 v[{rb+8}:{rb+11}], v14")
        e(f"  ds_read_b128 v[{rb+12}:{rb+15}], v14 offset:1024")
    rd(0); rd(1)
    for j in range(4):
        rb = 16 + 16*j; mb = 80 + 4*j
        e(f"  s_waitcnt lgkmcnt({6 if j < 3 else 0})")
        if j + 2 < 4: rd(j + 2)
        e(f"  v_max_f32 v100, v{mb}, v{mb+2}")
        e(f"  v_sub_f32 v101, v{mb}, v100")
        e(f"  v_sub_f32 v102, v{mb+2}, v100")
        e("  v_exp_f32 v101, v101")
        e("  v_exp_f32 v102, v102")
        e("  s_nop 0")
        e(f"  v_mul_f32 v103, v101, v{mb+1}")
        e(f"  v_fma_f32 v{mb+1}, v102, v{mb+3}, v103     ; L")
        e(f"  v_mov_b32 v{mb}, v100                       ; M")
        for r in range(8):
            e(f"  v_mul_f32 v{rb+r}, v101, v{rb+r}")
            e(f"  v_fma_f32 v{rb+r}, v102, v{rb+8+r}, v{rb+r}")
        for r in range(4):
            e(f"  v_cvt_pk_bf16_f32 v{rb+8+r}, v{rb+2*r}, v{rb+2*r+1}")
        e(f"  s_cmp_lg_u32 s59, {j}")
        e(f"  s_cbranch_scc1 L_st{j}")
        for r in range(8):
            e(f"  v_mov_b32 v{108+r}, v{rb+r}")
        e(f"  v_mov_b32 v116, v{mb}")
        e(f"  v_mov_b32 v117, v{mb+1}")
        e("  s_cmp_eq_u32 s47, 1")
        e(f"  s_cbranch_scc1 L_nost{j}")
        e(f"L_st{j}:")
        e(f"  s_add_u32 s46, s40, {j*8192}")
        e(f"  buffer_store_dwordx4 v[{rb+8}:{rb+11}], v8, s[48:51], s46 offen {PPOL}")
        e(f"L_nost{j}:")
    e("  s_cmp_lg_u32 s20, 0")
    e("  s_cbranch_scc1 L_noml")
    e("  s_lshl_b32 s46, s2, 10")
    e(f"  s_add_u32 s46, s46, {ML_OFF}")
    e("  s_add_u32 s52, s10, s46")
    e("  s_addc_u32 s53, s11, 0")
    e("  v_lshlrev_b32 v14, 3, v2")
    e("  s_mov_b32 s55, 0x00020000")
    e("  s_mov_b32 s54, 1024")
    e("  v_cmp_gt_u32 vcc, 32, v2")
    e("  s_and_saveexec_b64 s[44:45], vcc")
    for j in range(4):
        mb = 80 + 4*j
        e(f"  buffer_store_dwordx2 v[{mb}:{mb+1}], v14, s[52:55], 0 offen offset:{j*256} {PPOL}")
    e("  s_mov_b64 exec, s[44:45]")
    e("L_noml:")
    stamp()
    e("  s_waitcnt vmcnt(0)")
    stamp()
    e("  s_barrier")
    stamp()
    e("  s_cmp_lg_u32 s20, 0")
    e("  s_cbranch_scc1 L_w_notzero")
    e("  v_mov_b32 v104, s47")
    e("  buffer_store_dword v104, v15, s[16:19], 0 offen sc1")
    e("  s_cmp_eq_u32 s47, 2")
    e("  s_cbranch_scc1 L_w_notzero")
    e("  s_lshl_b32 s24, s58, 9")
    e(f"  s_add_u32 s24, s24, {FLAG_OFF}")
    e("  s_add_u32 s16, s10, s24")
    e("  s_addc_u32 s17, s11, 0")
    e("  s_mov_b32 s18, 512")
    e("  v_lshlrev_b32 v105, 7, v2")
    e("L_poll:")
    e("  buffer_load_dword v104, v105, s[16:19], 0 offen sc1")
    e("  s_waitcnt vmcnt(0)")
    e("  v_readlane_b32 s24, v104, 0")
    e("  v_readlane_b32 s25, v104, 1")
    e("  v_readlane_b32 s26, v104, 2")
    e("  v_readlane_b32 s27, v104, 3")
    e("  s_nop 3")
    e("  s_min_u32 s44, s24, s25")
    e("  s_min_u32 s45, s26, s27")
    e("  s_min_u32 s44, s44, s45")
    e("  s_cmp_eq_u32 s44, 0")
    e("  s_cbranch_scc0 L_polldone")
    e("  s_sleep 1")
    e("  s_branch L_poll")
    e("L_polldone:")
    e("  s_mov_b32 s44, 0")
    e("  s_mov_b32 s45, 0")
    for sp, r in enumerate(("s24", "s25", "s26", "s27")):
        e(f"  s_cmp_eq_u32 {r}, 2")
        e(f"  s_cselect_b32 s46, {1 << sp}, 0")
        e(f"  s_cselect_b32 s42, 0, {1 << sp}")
        e("  s_or_b32 s44, s44, s46")
        e("  s_or_b32 s45, s45, s42")
    e("  s_ff1_i32_b32 s46, s45")
    e("  s_cmp_eq_u32 s46, s59")
    e("  s_cselect_b32 s42, s44, 0")
    e(f"  v_mov_b32 v105, {XLDS+4}")
    e("  v_mov_b32 v106, s42")
    e("  ds_write_b32 v105, v106")
    e("  s_waitcnt lgkmcnt(0)")
    e("L_w_notzero:")
    e("  s_barrier")
    e("  s_cmp_eq_u32 s47, 2")
    e("  s_cbranch_scc1 L_done")
    stamp()
    e("  s_lshl_b32 s46, s58, 17")
    e("  s_add_u32 s48, s10, s46")
    e("  s_addc_u32 s49, s11, 0")
    e("  s_mov_b32 s50, 131072")
    e("  s_lshl_b32 s46, s58, 12")
    e(f"  s_add_u32 s46, s46, {ML_OFF}")
    e("  s_add_u32 s52, s10, s46")
    e("  s_addc_u32 s53, s11, 0")
    e("  s_mov_b32 s54, 4096")
    e("  s_mov_b32 s55, 0x00020000")
    e("  v_and_b32 v20, 31, v2")
    e("  v_lshlrev_b32 v20, 3, v20")
    e("  s_lshl_b32 s44, s59, 8                 ; j*256")
    e("  s_lshl_b32 s45, s59, 13")
    e("  s_add_u32 s45, s45, s40                ; j*8192 + w*1024")
    for k in range(1, 4):
        e(f"  s_add_u32 s46, s59, {k}")
        e("  s_and_b32 s46, s46, 3")
        e("  s_lshl_b32 s24, s46, 10")
        e("  s_add_u32 s24, s24, s44")
        e(f"  buffer_load_dwordx2 v[{22+2*k}:{23+2*k}], v20, s[52:55], s24 offen {LPOL}")
        e("  s_lshl_b32 s24, s46, 15")
        e("  s_add_u32 s24, s24, s45")
        e(f"  buffer_load_dwordx4 v[{28+4*k}:{31+4*k}], v8, s[48:51], s24 offen {LPOL}")
    e(f"  v_mov_b32 v105, {XLDS+4}")
    e("  ds_read_b32 v106, v105")
    e("  v_lshrrev_b32 v6, 5, v2")
    e("  v_and_b32 v7, 31, v2")
    e("  v_lshlrev_b32 v7, 8, v7")
    e("  v_lshl_add_u32 v7, v6, 4, v7")
    e("  s_lshl_b32 s46, s20, 5")
    e("  v_add_u32 v7, s46, v7")
    e("  s_mov_b32 s61, 0xffff0000")
    e("  s_waitcnt lgkmcnt(0)")
    e("  v_readfirstlane_b32 s42, v106")
    def fin(ms, ls, first_fp32, srcs, jreg):
        e(f"  v_max_f32 v16, v{ms[0]}, v{ms[1]}")
        e(f"  v_max3_f32 v16, v16, v{ms[2]}, v{ms[3]}")
        for m in ms: e(f"  v_sub_f32 v{m}, v{m}, v16")
        for m in ms: e(f"  v_exp_f32 v{m}, v{m}")
        e("  s_nop 0")
        e(f"  v_mul_f32 v17, v{ms[0]}, v{ls[0]}")
        for i in range(1, 4): e(f"  v_fma_f32 v17, v{ms[i]}, v{ls[i]}, v17")
        e("  v_rcp_f32 v17, v17")
        e("  s_nop 0")
        for m in ms: e(f"  v_mul_f32 v{m}, v{m}, v17")
        if first_fp32:
            for r in range(8): e(f"  v_mul_f32 v{108+r}, v{ms[0]}, v{108+r}")
        for idx, (mi, src) in enumerate(srcs):
            for d in range(4):
                e(f"  v_lshlrev_b32 v18, 16, v{src+d}")
                e(f"  v_and_b32 v19, s61, v{src+d}")
                if idx == 0 and not first_fp32:
                    e(f"  v_mul_f32 v{108+2*d}, v{mi}, v18")
                    e(f"  v_mul_f32 v{109+2*d}, v{mi}, v19")
                else:
                    e(f"  v_fma_f32 v{108+2*d}, v{mi}, v18, v{108+2*d}")
                    e(f"  v_fma_f32 v{109+2*d}, v{mi}, v19, v{109+2*d}")
        for jj in range(4):
            e(f"  v_cvt_pk_bf16_f32 v{64+jj}, v{108+2*jj}, v{109+2*jj}")
        e("  s_nop 1")
        e("  v_permlane32_swap_b32 v64, v66")
        e("  v_permlane32_swap_b32 v65, v67")
        e("  s_lshl_b32 s46, s58, 2")
        e(f"  s_add_u32 s46, s46, {jreg}")
        e("  s_lshl_b32 s46, s46, 13")
        e("  s_add_u32 s28, s12, s46")
        e("  s_addc_u32 s29, s13, 0")
        e("  s_mov_b32 s30, 8192")
        e("  s_mov_b32 s31, 0x00020000")
        e("  buffer_store_dwordx4 v[64:67], v7, s[28:31], 0 offen")
    e("  s_waitcnt vmcnt(0)")
    fin([116, 24, 26, 28], [117, 25, 27, 29], True, [(24, 32), (26, 36), (28, 40)], "s59")
    e("L_finloop:")
    e("  s_cmp_eq_u32 s42, 0")
    e("  s_cbranch_scc1 L_finend")
    e("  s_ff1_i32_b32 s44, s42                ; j")
    e("  s_lshl_b32 s45, 1, s44")
    e("  s_andn2_b32 s42, s42, s45")
    e("  s_lshl_b32 s45, s44, 8")
    for sp in range(4):
        e(f"  buffer_load_dwordx2 v[{24+2*sp}:{25+2*sp}], v20, s[52:55], s45 offen offset:{1024*sp} {LPOL}")
    e("  s_lshl_b32 s45, s44, 13")
    e("  s_add_u32 s45, s45, s40")
    for sp in range(4):
        e(f"  buffer_load_dwordx4 v[{32+4*sp}:{35+4*sp}], v8, s[48:51], s45 offen {LPOL}")
        if sp < 3: e("  s_add_u32 s45, s45, 32768")
    e("  s_waitcnt vmcnt(0)")
    fin([24, 26, 28, 30], [25, 27, 29, 31], False, [(24, 32), (26, 36), (28, 40), (30, 44)], "s44")
    e("  s_branch L_finloop")
    e("L_finend:")
    if DIAG:
        e("  s_waitcnt vmcnt(0)")
        e("  s_memtime s[94:95]")
        e("  s_memrealtime s[96:97]")
        e("  s_waitcnt lgkmcnt(0)")
        e("  s_sub_u32 s94, s94, s90")
        e("  s_sub_u32 s96, s96, s92")
        e("  s_cmp_lg_u32 s20, 0")
        e("  s_cbranch_scc1 L_done")
        e("  s_cmp_ge_u32 s2, 4")
        e("  s_cbranch_scc1 L_done")
        e("  s_sub_u32 s98, s98, s90")
        e("  s_sub_u32 s88, s88, s90")
        e("  s_lshl_b32 s46, s2, 4")
        e("  s_add_u32 s48, s14, s46")
        e("  s_addc_u32 s49, s15, 0")
        e("  s_mov_b32 s50, 16")
        e("  s_mov_b32 s51, 0x00020000")
        e("  v_mov_b32 v4, s88")
        e("  v_mov_b32 v5, s98")
        e("  s_sub_u32 s86, s86, s90")
        e("  s_sub_u32 s84, s84, s90")
        e("  v_mov_b32 v6, s86")
        e("  v_mov_b32 v7, s84")
        e("  v_lshlrev_b32 v3, 4, v2")
        e("  buffer_store_dwordx4 v[4:7], v3, s[48:51], 0 offen")
    if STAMP:
        e("  s_waitcnt vmcnt(0)")
        stamp()
        e("  s_waitcnt lgkmcnt(0)")
        e("  s_lshl_b32 s46, s2, 3")
        e("  s_add_u32 s46, s46, s20")
        e("  s_lshl_b32 s46, s46, 8")
        e("  s_add_u32 s46, s46, 0x2000000")
        e("  s_add_u32 s48, s10, s46")
        e("  s_addc_u32 s49, s11, 0")
        e("  s_mov_b32 s50, 256")
        e("  s_mov_b32 s51, 0x00020000")
        e("  v_mov_b32 v3, 0")
        for i_ in range(nstamp[0]):
            e(f"  v_mov_b32 v4, s{66+2*i_}")
            e(f"  v_mov_b32 v5, s{67+2*i_}")
            e(f"  buffer_store_dwordx2 v[4:5], v3, s[48:51], 0 offen offset:{8*i_}")
    e("L_done:")
    e("  s_endpgm")

e(HEADER.rstrip())
e(f"; @launch grid=(256,1,1) block=(512,1,1) lds=163840")
e('.amdgcn_target "amdgcn-amd-amdhsa--gfx950"')
e(".text")
kernel()
e('.section .rodata,"a"')
e(".p2align 6")
e(f".amdhsa_kernel {NAME}")
e("  .amdhsa_next_free_vgpr 256")
e(f"  .amdhsa_next_free_sgpr {102 if (STAMP or DIAG) else 72}")
e("  .amdhsa_accum_offset 256")
e("  .amdhsa_group_segment_fixed_size 0")
e("  .amdhsa_kernarg_size 48")
e("  .amdhsa_user_sgpr_count 2")
e("  .amdhsa_user_sgpr_kernarg_segment_ptr 1")
e("  .amdhsa_system_sgpr_workgroup_id_x 1")
e(".end_amdhsa_kernel")
open(sys.argv[1] if len(sys.argv) > 1 else "standalone__gqa_softmax__sampling.s", "w").write("\n".join(out) + "\n")
```

```python
import sys, os
POL = os.environ.get("POL", "nt")
PPOL = os.environ.get("PPOL", "sc1")
LPOL = os.environ.get("LPOL", "sc1")
STAMP = int(os.environ.get("STAMP", "0"))
DIAG = int(os.environ.get("DIAG", "0"))
PRIO = int(os.environ.get("PRIO", "1"))
FORCE_ABANDON = int(os.environ.get("FORCE_ABANDON", "0"))
nstamp = [0]
def stamp():
    if STAMP:
        i = nstamp[0]; nstamp[0] += 1
        e(f"  s_memtime s[{60+6+2*i}:{60+7+2*i}]")

HEADER = """; Kernarg layout for this problem (48 bytes, ptrs only, base s[0:1]):
"""
out = []
def e(s=""):
    out.append(s)

Q0 = 16; KF = 48; VF = 80; SA = 112; SB = 128; P0 = 144; O0 = 160
KA2 = [3, 4, 5, 6, 7, 9, 10, 11]
KA = 224; VA = 232; DK0, DK1, DV = 236, 237, 238
VM, VL = 239, 240
T0 = 241
ML_OFF = 16 * 1024 * 1024
FLAG_OFF = 17 * 1024 * 1024
XLDS = 131072
NAME = "standalone__gqa_softmax__sampling_kernel"

def dma_k(t):
    e(f"  s_add_u32 s38, s37, {(t%5)*16384}")
    e("  s_mov_b32 m0, s38")
    e(f"  s_mov_b32 s39, {t*16384}")
    e(f"  buffer_load_dwordx4 v{DK0}, s[28:31], s39 offen {POL} lds")
    e(f"  buffer_load_dwordx4 v{DK1}, s[28:31], s39 offen offset:1024 {POL} lds")
def dma_v(t):
    e(f"  s_add_u32 s38, s37, {81920+(t%5)*16384}")
    e("  s_mov_b32 m0, s38")
    e(f"  s_mov_b32 s39, {t*16384}")
    e(f"  buffer_load_dwordx4 v{DV}, s[32:35], s39 offen {POL} lds")
    e(f"  buffer_load_dwordx4 v{DV}, s[32:35], s39 offen offset:1024 {POL} lds")

WAITS = {0: 10, 5: 10, 6: 8, 7: 4, 8: 2, 9: 0}
def top(i):
    n = WAITS.get(i, 12)
    e(f"  ; ---- interval {i} ----")
    e(f"  s_waitcnt vmcnt({n})")
    e("  s_barrier")
    if i in (0, 1, 9): stamp()
    if i + 4 <= 7: dma_k(i + 4)
    if i + 2 <= 7: dma_v(i + 2)

def vread1(slot, s, idx):
    t, ee = idx >> 1, idx & 1
    bb = VF + (s & 1)*16 + t*4 + 2*ee
    base = VA
    if slot >= 65536:
        base = T0 + 0; slot -= 65536
    e(f"  ds_read_b64_tr_b16 v[{bb}:{bb+1}], v{base+t} offset:{slot+(16*s+8*ee)*256}")
def vreads(slot, s):
    for idx in range(8): vread1(slot, s, idx)
def pvm(s):
    for t in range(4):
        bb = VF + (s & 1)*16 + t*4
        e(f"  v_mfma_f32_32x32x16_bf16 v[{O0+16*t}:{O0+16*t+15}], v[{bb}:{bb+3}], v[{P0+4*s}:{P0+4*s+3}], v[{O0+16*t}:{O0+16*t+15}]")

def mfma_phase(tk, tv):
    if PRIO: e("  s_setprio 1")
    vs = None if tv is None else (tv % 5) * 16384
    if vs is not None and vs >= 65536:
        for t in range(4): e(f"  v_add_u32 v{T0+t}, 0x10000, v{VA+t}")
    if tk is not None:
        slot = (tk % 5) * 16384
        kreg = lambda st: KA + st
        if slot >= 65536:
            slot -= 65536
            kreg = lambda st: KA2[st]
        for st in range(8):
            e(f"  ds_read_b128 v[{KF+4*st}:{KF+4*st+3}], v{kreg(st)} offset:{slot}")
        for st in range(8):
            e("  s_waitcnt lgkmcnt(7)")
            c = "0" if st == 0 else f"v[{SA}:{SA+15}]"
            e(f"  v_mfma_f32_32x32x16_bf16 v[{SA}:{SA+15}], v[{KF+4*st}:{KF+4*st+3}], v[{Q0+4*st}:{Q0+4*st+3}], {c}")
            e(f"  ds_read_b128 v[{KF+4*st}:{KF+4*st+3}], v{kreg(st)} offset:{slot+8192}")
        for st in range(8):
            if tv is not None:
                e(f"  s_waitcnt lgkmcnt({min(7+st, 13)})" if st < 7 else "  s_waitcnt lgkmcnt(13)")
            else:
                e(f"  s_waitcnt lgkmcnt({7-st})")
            c = "0" if st == 0 else f"v[{SB}:{SB+15}]"
            e(f"  v_mfma_f32_32x32x16_bf16 v[{SB}:{SB+15}], v[{KF+4*st}:{KF+4*st+3}], v[{Q0+4*st}:{Q0+4*st+3}], {c}")
            if tv is not None:
                vread1(vs, st >> 2, 2*(st & 3)); vread1(vs, st >> 2, 2*(st & 3) + 1)
    elif tv is not None:
        vreads(vs, 0); vreads(vs, 1)
    if tv is not None:
        e("  s_waitcnt lgkmcnt(8)"); pvm(0)
        vreads(vs, 2)
        e("  s_waitcnt lgkmcnt(8)"); pvm(1)
        vreads(vs, 3)
        e("  s_waitcnt lgkmcnt(8)"); pvm(2)
        e("  s_waitcnt lgkmcnt(0)"); pvm(3)
    if PRIO: e("  s_setprio 0")

def valu_phase(lab):
    a = lambda i: f"v{SA+i}"
    b = lambda i: f"v{SB+i}"
    t_ = lambda i: f"v{T0+i}"
    e(f"  v_max3_f32 {t_(0)}, {a(0)}, {a(1)}, {a(2)}")
    e(f"  v_max3_f32 {t_(1)}, {a(3)}, {a(4)}, {a(5)}")
    e(f"  v_max3_f32 {t_(2)}, {a(6)}, {a(7)}, {a(8)}")
    e(f"  v_max3_f32 {t_(3)}, {a(9)}, {a(10)}, {a(11)}")
    e(f"  v_max3_f32 {t_(4)}, {a(12)}, {a(13)}, {a(14)}")
    e(f"  v_max3_f32 {t_(0)}, {t_(0)}, {t_(1)}, {a(15)}")
    e(f"  v_max3_f32 {t_(2)}, {t_(2)}, {t_(3)}, {t_(4)}")
    e(f"  v_max3_f32 {t_(1)}, {b(0)}, {b(1)}, {b(2)}")
    e(f"  v_max3_f32 {t_(3)}, {b(3)}, {b(4)}, {b(5)}")
    e(f"  v_max3_f32 {t_(4)}, {b(6)}, {b(7)}, {b(8)}")
    e(f"  v_max3_f32 {t_(5)}, {b(9)}, {b(10)}, {b(11)}")
    e(f"  v_max3_f32 {t_(6)}, {b(12)}, {b(13)}, {b(14)}")
    e(f"  v_max3_f32 {t_(0)}, {t_(0)}, {t_(2)}, {b(15)}")
    e(f"  v_max3_f32 {t_(1)}, {t_(1)}, {t_(3)}, {t_(4)}")
    e(f"  v_max3_f32 {t_(0)}, {t_(0)}, {t_(5)}, {t_(6)}")
    e(f"  v_max_f32 {t_(0)}, {t_(0)}, {t_(1)}")
    e(f"  v_mov_b32 {t_(1)}, {t_(0)}")
    e(f"  v_add_f32 {t_(2)}, s57, v{VM}")
    e("  s_nop 0")
    e(f"  v_permlane32_swap_b32 {t_(0)}, {t_(1)}")
    e(f"  v_max_f32 {t_(0)}, {t_(0)}, {t_(1)}")
    e(f"  v_mul_f32 {t_(0)}, s41, {t_(0)}")
    e(f"  v_cmp_gt_f32 vcc, {t_(0)}, {t_(2)}")
    e("  s_nop 1")
    e(f"  s_cbranch_vccz L_skip_{lab}")
    e(f"  v_max_f32 {t_(0)}, v{VM}, {t_(0)}")
    e(f"  v_sub_f32 {t_(1)}, v{VM}, {t_(0)}")
    e(f"  v_exp_f32 {t_(1)}, {t_(1)}")
    e(f"  v_mov_b32 v{VM}, {t_(0)}")
    for r in range(64):
        e(f"  v_mul_f32 v{O0+r}, {t_(1)}, v{O0+r}")
    e(f"  v_mul_f32 v{VL}, {t_(1)}, v{VL}")
    e(f"L_skip_{lab}:")
    for i in range(16):
        e(f"  v_fma_f32 {a(i)}, {a(i)}, s41, -v{VM}")
    for i in range(16):
        e(f"  v_exp_f32 {a(i)}, {a(i)}")
    for i in range(16):
        e(f"  v_fma_f32 {b(i)}, {b(i)}, s41, -v{VM}")
    for i in range(16):
        e(f"  v_exp_f32 {b(i)}, {b(i)}")
        if i % 2 == 1:
            j = i - 1
            e(f"  v_add_f32 {t_(j%4)}, {a(j)}, {a(j+1)}")
            e(f"  v_cvt_pk_bf16_f32 v{P0+j//2}, {a(j)}, {a(j+1)}")
            e(f"  v_add_f32 v{VL}, v{VL}, {t_(j%4)}")
    for i in range(0, 16, 2):
        e(f"  v_add_f32 {t_(i%4)}, {b(i)}, {b(i+1)}")
        e(f"  v_cvt_pk_bf16_f32 v{P0+8+i//2}, {b(i)}, {b(i+1)}")
        e(f"  v_add_f32 v{VL}, v{VL}, {t_(i%4)}")

def kernel():
    e(f".globl {NAME}")
    e(".p2align 8")
    e(f".type {NAME},@function")
    e(f"{NAME}:")
    e("  s_cmp_ge_u32 s2, 256")
    e("  s_cbranch_scc1 L_done")
    if DIAG:
        e("  s_memtime s[90:91]")
        e("  s_memrealtime s[92:93]")
    e("  s_load_dwordx4 s[4:7], s[0:1], 0      ; q, k")
    e("  s_load_dwordx2 s[8:9], s[0:1], 16     ; v")
    e("  s_load_dwordx4 s[12:15], s[0:1], 24")
    e("  s_load_dwordx2 s[10:11], s[0:1], 40   ; ws")
    e("  v_lshrrev_b32 v1, 6, v0")
    e("  v_and_b32 v2, 63, v0                  ; lane")
    e("  v_readfirstlane_b32 s20, v1")
    e("  s_nop 3")
    e("  s_and_b32 s21, s20, 3                 ; q tile")
    e("  s_lshr_b32 s22, s20, 2                ; group")
    e("  s_lshr_b32 s58, s2, 2                 ; g")
    e("  s_and_b32 s59, s2, 3                  ; split")
    e("  v_and_b32 v3, 31, v2                  ; l&31")
    e("  v_lshrrev_b32 v4, 5, v2               ; h")
    e("  v_and_b32 v5, 15, v2                  ; i = l&15")
    e("  v_lshrrev_b32 v6, 4, v2               ; g = l>>4")
    e("  s_lshl_b32 s36, s20, 3")
    e("  v_add_u32 v8, s36, v6")
    e("  v_and_b32 v9, 15, v8")
    e("  v_xor_b32 v9, v9, v5")
    e(f"  v_lshlrev_b32 v{DK0}, 8, v8")
    e(f"  v_lshl_add_u32 v{DK0}, v9, 4, v{DK0}")
    e("  v_add_u32 v10, 4, v8")
    e("  v_and_b32 v9, 15, v10")
    e("  v_xor_b32 v9, v9, v5")
    e(f"  v_lshlrev_b32 v{DK1}, 8, v10")
    e(f"  v_lshl_add_u32 v{DK1}, v9, 4, v{DK1}")
    e(f"  v_subrev_u32 v{DK1}, 1024, v{DK1}")
    e("  v_lshlrev_b32 v9, 2, v6")
    e("  v_xor_b32 v9, v9, v5")
    e(f"  v_lshlrev_b32 v{DV}, 8, v8")
    e(f"  v_lshl_add_u32 v{DV}, v9, 4, v{DV}")
    e("  s_lshl_b32 s37, s20, 11")
    e("  s_lshl_b32 s23, s2, 17")
    e("  s_waitcnt lgkmcnt(0)")
    if DIAG: e("  s_memtime s[86:87]")
    e("  s_lshr_b32 s24, s58, 2")
    e("  s_lshl_b32 s24, s24, 2")
    e("  s_add_u32 s24, s24, 192")
    e("  s_and_b32 s65, s58, 3")
    e("  s_lshl_b32 s65, s65, 3")
    e("  s_add_u32 s60, s14, s24")
    e("  s_addc_u32 s61, s15, 0")
    e("  s_mov_b32 s62, 4")
    e("  s_mov_b32 s63, 0x00020000")
    e("  v_lshlrev_b32 v15, 2, v2")
    e("  s_cmp_lg_u32 s20, 0")
    e("  s_cbranch_scc1 L_noarrive")
    e("  s_lshl_b32 s24, s2, 7")
    e(f"  s_add_u32 s24, s24, {FLAG_OFF}")
    e("  s_add_u32 s16, s10, s24")
    e("  s_addc_u32 s17, s11, 0")
    e("  s_mov_b32 s18, 4")
    e("  s_mov_b32 s19, 0x00020000")
    e("  v_mov_b32 v14, 0")
    e("  buffer_store_dword v14, v15, s[16:19], 0 offen sc1")
    e("L_noarrive:")
    e("  s_add_u32 s28, s6, s23")
    e("  s_addc_u32 s29, s7, 0")
    e("  s_mov_b32 s30, 131072")
    e("  s_mov_b32 s31, 0x00020000")
    if DIAG: e("  s_memtime s[70:71]")
    dma_k(0)
    if DIAG: e("  s_memtime s[72:73]")
    e("  s_add_u32 s32, s8, s23")
    e("  s_addc_u32 s33, s9, 0")
    e("  s_mov_b32 s34, 131072")
    e("  s_mov_b32 s35, 0x00020000")
    e("  s_lshl_b32 s23, s58, 2")
    e("  s_add_u32 s23, s23, s21")
    e("  s_lshl_b32 s23, s23, 13")
    e("  s_add_u32 s24, s4, s23")
    e("  s_addc_u32 s25, s5, 0")
    e("  s_mov_b32 s26, 8192")
    e("  s_mov_b32 s27, 0x00020000")
    e("  v_lshlrev_b32 v7, 8, v3")
    e("  v_lshl_add_u32 v7, v4, 4, v7")
    for st in range(8):
        e(f"  buffer_load_dwordx4 v[{Q0+4*st}:{Q0+4*st+3}], v7, s[24:27], 0 offen offset:{32*st}")
    if DIAG: e("  s_memtime s[74:75]")
    dma_k(1)
    if DIAG: e("  s_memtime s[76:77]")
    dma_v(0)
    if DIAG: e("  s_memtime s[78:79]")
    dma_k(2); dma_v(1); dma_k(3)
    if DIAG: e("  s_memtime s[84:85]")
    e("  v_lshlrev_b32 v8, 8, v3")
    for st in range(8):
        e(f"  v_add_u32 v9, {2*st}, v4")
        e("  v_xor_b32 v9, v9, v5")
        e(f"  v_lshl_add_u32 v{KA+st}, v9, 4, v8")
    e("  v_lshrrev_b32 v9, 2, v5")
    e("  v_lshl_add_u32 v10, v4, 2, v9")
    e("  v_lshlrev_b32 v10, 8, v10")
    e("  v_add_u32 v10, 0x14000, v10")
    e("  v_and_b32 v11, 1, v6")
    e("  v_lshl_add_u32 v10, v11, 5, v10")
    e("  v_and_b32 v11, 3, v5")
    e("  v_lshl_add_u32 v10, v11, 3, v10")
    for t in range(4):
        e(f"  v_xor_b32 v11, {t}, v9")
        e(f"  v_lshl_add_u32 v{VA+t}, v11, 6, v10")
    for st in range(8):
        e(f"  v_add_u32 v{KA2[st]}, 0x10000, v{KA+st}")
    for r in range(64):
        e(f"  v_mov_b32 v{O0+r}, 0")
    e(f"  v_mov_b32 v{VM}, 0xff800000")
    e(f"  v_mov_b32 v{VL}, 0")
    e("  s_mov_b32 s41, 0x3e0293ee")
    e("  s_mov_b32 s57, 0x41000000             ; T = 8")
    stamp()
    e("  s_cmp_ge_u32 s22, 1")
    e("  s_cbranch_scc1 L_groupB")
    e("  ; ---- interval 0 (A) ----")
    e("  s_waitcnt vmcnt(10)")
    e("  s_cmp_lg_u32 s20, 0")
    e("  s_cbranch_scc1 L_noarr2")
    e("  s_lshl_b32 s24, 1, s65")
    e("  v_mov_b32 v14, s24")
    e("  buffer_atomic_add v14, v15, s[60:63], 0 offen sc1")
    e("L_noarr2:")
    e("  s_barrier")
    if DIAG: e("  s_memtime s[88:89]")
    stamp()
    dma_k(4); dma_v(2)
    mfma_phase(0, None)
    for j in range(4):
        top(2*j+1); valu_phase(f"a{j}")
        top(2*j+2); mfma_phase(2*j+2 if j < 3 else None, 2*j)
    top(9)
    e("  s_branch L_epi")
    e("L_groupB:")
    nstamp[0] = 1
    top(0)
    top(1); mfma_phase(1, None)
    for j in range(4):
        top(2*j+2); valu_phase(f"b{j}")
        top(2*j+3); mfma_phase(2*j+3 if j < 3 else None, 2*j+1)
    e("L_epi:")
    stamp()
    if DIAG: e("  s_memtime s[98:99]")
    t_ = lambda i: f"v{T0+i}"
    e("  s_cmp_lg_u32 s20, 0")
    e("  s_cbranch_scc1 L_nard")
    e("  buffer_load_dword v104, v15, s[60:63], 0 offen sc1")
    e("L_nard:")
    e(f"  v_mov_b32 {t_(1)}, v{VL}")
    e("  s_nop 7")
    e("  s_nop 7")
    e(f"  v_permlane32_swap_b32 v{VL}, {t_(1)}")
    e(f"  v_add_f32 v{VL}, v{VL}, {t_(1)}")
    e("  s_barrier")
    stamp()
    e("  s_lshl_b32 s43, s20, 14")
    e("  v_lshlrev_b32 v8, 4, v2")
    e("  v_add_u32 v9, s43, v8")
    for qd in range(16):
        e(f"  ds_write_b128 v9, v[{O0+4*qd}:{O0+4*qd+3}] offset:{1024*qd}")
    e("  s_lshl_b32 s43, s20, 9")
    e("  v_lshlrev_b32 v10, 3, v2")
    e("  v_add_u32 v11, s43, v10")
    e(f"  v_add_u32 v11, {XLDS+64}, v11")
    e(f"  v_mov_b32 v12, v{VM}")
    e(f"  v_mov_b32 v13, v{VL}")
    e("  ds_write_b64 v11, v[12:13]")
    e("  s_cmp_lg_u32 s20, 0")
    e("  s_cbranch_scc1 L_nard2")
    e("  s_waitcnt vmcnt(0)")
    e("  v_readfirstlane_b32 s46, v104")
    e("  s_nop 3")
    e("  s_lshr_b32 s46, s46, s65")
    e("  s_and_b32 s46, s46, 0xff")
    if FORCE_ABANDON:
        e("  s_cmp_lg_u32 s59, 1")
    else:
        e("  s_cmp_lg_u32 s46, 4")
    e("  s_cselect_b32 s47, 2, 1")
    e(f"  v_mov_b32 v105, {XLDS}")
    e("  v_mov_b32 v106, s47")
    e("  ds_write_b32 v105, v106")
    e("L_nard2:")
    e("  s_waitcnt lgkmcnt(0)")
    stamp()
    e("  s_barrier")
    stamp()
    e(f"  v_mov_b32 v105, {XLDS}")
    e("  ds_read_b32 v106, v105")
    e("  s_lshl_b32 s43, s20, 11")
    e("  v_add_u32 v9, s43, v8")
    e(f"  v_add_u32 v10, {XLDS+64}, v10")
    e("  s_lshl_b32 s46, s2, 15")
    e("  s_add_u32 s48, s10, s46")
    e("  s_addc_u32 s49, s11, 0")
    e("  s_mov_b32 s50, 32768")
    e("  s_mov_b32 s51, 0x00020000")
    e("  s_lshl_b32 s40, s20, 10               ; w*1024")
    e("  s_waitcnt lgkmcnt(0)")
    e("  v_readfirstlane_b32 s47, v106")
    def rd(j):
        rb = 16 + 16*j; mb = 80 + 4*j
        e(f"  ds_read_b64 v[{mb}:{mb+1}], v10 offset:{j*512}")
        e(f"  ds_read_b64 v[{mb+2}:{mb+3}], v10 offset:{(j+4)*512}")
        e(f"  v_add_u32 v14, {j*16384}, v9")
        e(f"  ds_read_b128 v[{rb}:{rb+3}], v14")
        e(f"  ds_read_b128 v[{rb+4}:{rb+7}], v14 offset:1024")
        e(f"  v_add_u32 v14, {(j+4)*16384}, v9")
        e(f"  ds_read_b128 v[{rb+8}:{rb+11}], v14")
        e(f"  ds_read_b128 v[{rb+12}:{rb+15}], v14 offset:1024")
    rd(0); rd(1)
    for j in range(4):
        rb = 16 + 16*j; mb = 80 + 4*j
        e(f"  s_waitcnt lgkmcnt({6 if j < 3 else 0})")
        if j + 2 < 4: rd(j + 2)
        e(f"  v_max_f32 v100, v{mb}, v{mb+2}")
        e(f"  v_sub_f32 v101, v{mb}, v100")
        e(f"  v_sub_f32 v102, v{mb+2}, v100")
        e("  v_exp_f32 v101, v101")
        e("  v_exp_f32 v102, v102")
        e("  s_nop 0")
        e(f"  v_mul_f32 v103, v101, v{mb+1}")
        e(f"  v_fma_f32 v{mb+1}, v102, v{mb+3}, v103     ; L")
        e(f"  v_mov_b32 v{mb}, v100                       ; M")
        for r in range(8):
            e(f"  v_mul_f32 v{rb+r}, v101, v{rb+r}")
            e(f"  v_fma_f32 v{rb+r}, v102, v{rb+8+r}, v{rb+r}")
        for r in range(4):
            e(f"  v_cvt_pk_bf16_f32 v{rb+8+r}, v{rb+2*r}, v{rb+2*r+1}")
        e(f"  s_cmp_lg_u32 s59, {j}")
        e(f"  s_cbranch_scc1 L_st{j}")
        for r in range(8):
            e(f"  v_mov_b32 v{108+r}, v{rb+r}")
        e(f"  v_mov_b32 v116, v{mb}")
        e(f"  v_mov_b32 v117, v{mb+1}")
        e("  s_cmp_eq_u32 s47, 1")
        e(f"  s_cbranch_scc1 L_nost{j}")
        e(f"L_st{j}:")
        e(f"  s_add_u32 s46, s40, {j*8192}")
        e(f"  buffer_store_dwordx4 v[{rb+8}:{rb+11}], v8, s[48:51], s46 offen {PPOL}")
        e(f"L_nost{j}:")
    e("  s_cmp_lg_u32 s20, 0")
    e("  s_cbranch_scc1 L_noml")
    e("  s_lshl_b32 s46, s2, 10")
    e(f"  s_add_u32 s46, s46, {ML_OFF}")
    e("  s_add_u32 s52, s10, s46")
    e("  s_addc_u32 s53, s11, 0")
    e("  v_lshlrev_b32 v14, 3, v2")
    e("  s_mov_b32 s55, 0x00020000")
    e("  s_mov_b32 s54, 1024")
    e("  v_cmp_gt_u32 vcc, 32, v2")
    e("  s_and_saveexec_b64 s[44:45], vcc")
    for j in range(4):
        mb = 80 + 4*j
        e(f"  buffer_store_dwordx2 v[{mb}:{mb+1}], v14, s[52:55], 0 offen offset:{j*256} {PPOL}")
    e("  s_mov_b64 exec, s[44:45]")
    e("L_noml:")
    stamp()
    e("  s_waitcnt vmcnt(0)")
    stamp()
    e("  s_barrier")
    stamp()
    e("  s_cmp_lg_u32 s20, 0")
    e("  s_cbranch_scc1 L_w_notzero")
    e("  v_mov_b32 v104, s47")
    e("  buffer_store_dword v104, v15, s[16:19], 0 offen sc1")
    e("  s_cmp_eq_u32 s47, 2")
    e("  s_cbranch_scc1 L_w_notzero")
    e("  s_lshl_b32 s24, s58, 9")
    e(f"  s_add_u32 s24, s24, {FLAG_OFF}")
    e("  s_add_u32 s16, s10, s24")
    e("  s_addc_u32 s17, s11, 0")
    e("  s_mov_b32 s18, 512")
    e("  v_lshlrev_b32 v105, 7, v2")
    e("L_poll:")
    e("  buffer_load_dword v104, v105, s[16:19], 0 offen sc1")
    e("  s_waitcnt vmcnt(0)")
    e("  v_readlane_b32 s24, v104, 0")
    e("  v_readlane_b32 s25, v104, 1")
    e("  v_readlane_b32 s26, v104, 2")
    e("  v_readlane_b32 s27, v104, 3")
    e("  s_nop 3")
    e("  s_min_u32 s44, s24, s25")
    e("  s_min_u32 s45, s26, s27")
    e("  s_min_u32 s44, s44, s45")
    e("  s_cmp_eq_u32 s44, 0")
    e("  s_cbranch_scc0 L_polldone")
    e("  s_sleep 1")
    e("  s_branch L_poll")
    e("L_polldone:")
    e("  s_mov_b32 s44, 0")
    e("  s_mov_b32 s45, 0")
    for sp, r in enumerate(("s24", "s25", "s26", "s27")):
        e(f"  s_cmp_eq_u32 {r}, 2")
        e(f"  s_cselect_b32 s46, {1 << sp}, 0")
        e(f"  s_cselect_b32 s42, 0, {1 << sp}")
        e("  s_or_b32 s44, s44, s46")
        e("  s_or_b32 s45, s45, s42")
    e("  s_ff1_i32_b32 s46, s45")
    e("  s_cmp_eq_u32 s46, s59")
    e("  s_cselect_b32 s42, s44, 0")
    e(f"  v_mov_b32 v105, {XLDS+4}")
    e("  v_mov_b32 v106, s42")
    e("  ds_write_b32 v105, v106")
    e("  s_waitcnt lgkmcnt(0)")
    e("L_w_notzero:")
    e("  s_barrier")
    e("  s_cmp_eq_u32 s47, 2")
    e("  s_cbranch_scc1 L_done")
    stamp()
    e("  s_lshl_b32 s46, s58, 17")
    e("  s_add_u32 s48, s10, s46")
    e("  s_addc_u32 s49, s11, 0")
    e("  s_mov_b32 s50, 131072")
    e("  s_lshl_b32 s46, s58, 12")
    e(f"  s_add_u32 s46, s46, {ML_OFF}")
    e("  s_add_u32 s52, s10, s46")
    e("  s_addc_u32 s53, s11, 0")
    e("  s_mov_b32 s54, 4096")
    e("  s_mov_b32 s55, 0x00020000")
    e("  v_and_b32 v20, 31, v2")
    e("  v_lshlrev_b32 v20, 3, v20")
    e("  s_lshl_b32 s44, s59, 8                 ; j*256")
    e("  s_lshl_b32 s45, s59, 13")
    e("  s_add_u32 s45, s45, s40                ; j*8192 + w*1024")
    for k in range(1, 4):
        e(f"  s_add_u32 s46, s59, {k}")
        e("  s_and_b32 s46, s46, 3")
        e("  s_lshl_b32 s24, s46, 10")
        e("  s_add_u32 s24, s24, s44")
        e(f"  buffer_load_dwordx2 v[{22+2*k}:{23+2*k}], v20, s[52:55], s24 offen {LPOL}")
        e("  s_lshl_b32 s24, s46, 15")
        e("  s_add_u32 s24, s24, s45")
        e(f"  buffer_load_dwordx4 v[{28+4*k}:{31+4*k}], v8, s[48:51], s24 offen {LPOL}")
    e(f"  v_mov_b32 v105, {XLDS+4}")
    e("  ds_read_b32 v106, v105")
    e("  v_lshrrev_b32 v6, 5, v2")
    e("  v_and_b32 v7, 31, v2")
    e("  v_lshlrev_b32 v7, 8, v7")
    e("  v_lshl_add_u32 v7, v6, 4, v7")
    e("  s_lshl_b32 s46, s20, 5")
    e("  v_add_u32 v7, s46, v7")
    e("  s_mov_b32 s61, 0xffff0000")
    e("  s_waitcnt lgkmcnt(0)")
    e("  v_readfirstlane_b32 s42, v106")
    def fin(ms, ls, first_fp32, srcs, jreg):
        e(f"  v_max_f32 v16, v{ms[0]}, v{ms[1]}")
        e(f"  v_max3_f32 v16, v16, v{ms[2]}, v{ms[3]}")
        for m in ms: e(f"  v_sub_f32 v{m}, v{m}, v16")
        for m in ms: e(f"  v_exp_f32 v{m}, v{m}")
        e("  s_nop 0")
        e(f"  v_mul_f32 v17, v{ms[0]}, v{ls[0]}")
        for i in range(1, 4): e(f"  v_fma_f32 v17, v{ms[i]}, v{ls[i]}, v17")
        e("  v_rcp_f32 v17, v17")
        e("  s_nop 0")
        for m in ms: e(f"  v_mul_f32 v{m}, v{m}, v17")
        if first_fp32:
            for r in range(8): e(f"  v_mul_f32 v{108+r}, v{ms[0]}, v{108+r}")
        for idx, (mi, src) in enumerate(srcs):
            for d in range(4):
                e(f"  v_lshlrev_b32 v18, 16, v{src+d}")
                e(f"  v_and_b32 v19, s61, v{src+d}")
                if idx == 0 and not first_fp32:
                    e(f"  v_mul_f32 v{108+2*d}, v{mi}, v18")
                    e(f"  v_mul_f32 v{109+2*d}, v{mi}, v19")
                else:
                    e(f"  v_fma_f32 v{108+2*d}, v{mi}, v18, v{108+2*d}")
                    e(f"  v_fma_f32 v{109+2*d}, v{mi}, v19, v{109+2*d}")
        for jj in range(4):
            e(f"  v_cvt_pk_bf16_f32 v{64+jj}, v{108+2*jj}, v{109+2*jj}")
        e("  s_nop 1")
        e("  v_permlane32_swap_b32 v64, v66")
        e("  v_permlane32_swap_b32 v65, v67")
        e("  s_lshl_b32 s46, s58, 2")
        e(f"  s_add_u32 s46, s46, {jreg}")
        e("  s_lshl_b32 s46, s46, 13")
        e("  s_add_u32 s28, s12, s46")
        e("  s_addc_u32 s29, s13, 0")
        e("  s_mov_b32 s30, 8192")
        e("  s_mov_b32 s31, 0x00020000")
        e("  buffer_store_dwordx4 v[64:67], v7, s[28:31], 0 offen")
    e("  s_waitcnt vmcnt(0)")
    fin([116, 24, 26, 28], [117, 25, 27, 29], True, [(24, 32), (26, 36), (28, 40)], "s59")
    e("L_finloop:")
    e("  s_cmp_eq_u32 s42, 0")
    e("  s_cbranch_scc1 L_finend")
    e("  s_ff1_i32_b32 s44, s42                ; j")
    e("  s_lshl_b32 s45, 1, s44")
    e("  s_andn2_b32 s42, s42, s45")
    e("  s_lshl_b32 s45, s44, 8")
    for sp in range(4):
        e(f"  buffer_load_dwordx2 v[{24+2*sp}:{25+2*sp}], v20, s[52:55], s45 offen offset:{1024*sp} {LPOL}")
    e("  s_lshl_b32 s45, s44, 13")
    e("  s_add_u32 s45, s45, s40")
    for sp in range(4):
        e(f"  buffer_load_dwordx4 v[{32+4*sp}:{35+4*sp}], v8, s[48:51], s45 offen {LPOL}")
        if sp < 3: e("  s_add_u32 s45, s45, 32768")
    e("  s_waitcnt vmcnt(0)")
    fin([24, 26, 28, 30], [25, 27, 29, 31], False, [(24, 32), (26, 36), (28, 40), (30, 44)], "s44")
    e("  s_branch L_finloop")
    e("L_finend:")
    if DIAG:
        e("  s_waitcnt vmcnt(0)")
        e("  s_memtime s[94:95]")
        e("  s_memrealtime s[96:97]")
        e("  s_waitcnt lgkmcnt(0)")
        e("  s_sub_u32 s94, s94, s90")
        e("  s_sub_u32 s96, s96, s92")
        e("  s_cmp_lg_u32 s20, 0")
        e("  s_cbranch_scc1 L_done")
        e("  s_cmp_ge_u32 s2, 2")
        e("  s_cbranch_scc1 L_done")
        e("  s_lshl_b32 s46, s2, 5")
        e("  s_add_u32 s48, s14, s46")
        e("  s_addc_u32 s49, s15, 0")
        e("  s_mov_b32 s50, 32")
        e("  s_mov_b32 s51, 0x00020000")
        for i_, r in enumerate((86, 70, 72, 74, 76, 78, 84, 88)):
            e(f"  s_sub_u32 s{r}, s{r}, s90")
            e(f"  v_mov_b32 v{4+i_}, s{r}")
        e("  v_lshlrev_b32 v3, 5, v2")
        e("  buffer_store_dwordx4 v[4:7], v3, s[48:51], 0 offen")
        e("  buffer_store_dwordx4 v[8:11], v3, s[48:51], 0 offen offset:16")
    if STAMP:
        e("  s_waitcnt vmcnt(0)")
        stamp()
        e("  s_waitcnt lgkmcnt(0)")
        e("  s_lshl_b32 s46, s2, 3")
        e("  s_add_u32 s46, s46, s20")
        e("  s_lshl_b32 s46, s46, 8")
        e("  s_add_u32 s46, s46, 0x2000000")
        e("  s_add_u32 s48, s10, s46")
        e("  s_addc_u32 s49, s11, 0")
        e("  s_mov_b32 s50, 256")
        e("  s_mov_b32 s51, 0x00020000")
        e("  v_mov_b32 v3, 0")
        for i_ in range(nstamp[0]):
            e(f"  v_mov_b32 v4, s{66+2*i_}")
            e(f"  v_mov_b32 v5, s{67+2*i_}")
            e(f"  buffer_store_dwordx2 v[4:5], v3, s[48:51], 0 offen offset:{8*i_}")
    e("L_done:")
    e("  s_endpgm")

e(HEADER.rstrip())
e(f"; @launch grid=(256,1,1) block=(512,1,1) lds=163840")
e('.amdgcn_target "amdgcn-amd-amdhsa--gfx950"')
e(".text")
kernel()
e('.section .rodata,"a"')
e(".p2align 6")
e(f".amdhsa_kernel {NAME}")
e("  .amdhsa_next_free_vgpr 256")
e(f"  .amdhsa_next_free_sgpr {102 if (STAMP or DIAG) else 72}")
e("  .amdhsa_accum_offset 256")
e("  .amdhsa_group_segment_fixed_size 0")
e("  .amdhsa_kernarg_size 48")
e("  .amdhsa_user_sgpr_count 2")
e("  .amdhsa_user_sgpr_kernarg_segment_ptr 1")
e("  .amdhsa_system_sgpr_workgroup_id_x 1")
e(".end_amdhsa_kernel")
open(sys.argv[1] if len(sys.argv) > 1 else "standalone__gqa_softmax__sampling.s", "w").write("\n".join(out) + "\n")
```

```python
import sys, os
POL = os.environ.get("POL", "nt")
PPOL = os.environ.get("PPOL", "sc1")
LPOL = os.environ.get("LPOL", "sc1")
STAMP = int(os.environ.get("STAMP", "0"))
DIAG = int(os.environ.get("DIAG", "0"))
PRIO = int(os.environ.get("PRIO", "1"))
FORCE_ABANDON = int(os.environ.get("FORCE_ABANDON", "0"))
nstamp = [0]
def stamp():
    if STAMP:
        i = nstamp[0]; nstamp[0] += 1
        e(f"  s_memtime s[{60+6+2*i}:{60+7+2*i}]")

HEADER = """; Kernarg layout for this problem (48 bytes, ptrs only, base s[0:1]):
"""
out = []
def e(s=""):
    out.append(s)

Q0 = 16; KF = 48; VF = 80; SA = 112; SB = 128; P0 = 144; O0 = 160
KA2 = [3, 4, 5, 6, 7, 9, 10, 11]
KA = 224; VA = 232; DK0, DK1, DV = 236, 237, 238
VM, VL = 239, 240
T0 = 241
ML_OFF = 16 * 1024 * 1024
FLAG_OFF = 17 * 1024 * 1024
XLDS = 131072
NAME = "standalone__gqa_softmax__sampling_kernel"

def dma_k(t):
    e(f"  s_add_u32 s38, s37, {(t%5)*16384}")
    e("  s_mov_b32 m0, s38")
    e(f"  s_mov_b32 s39, {t*16384}")
    e(f"  buffer_load_dwordx4 v{DK0}, s[28:31], s39 offen {POL} lds")
    e(f"  buffer_load_dwordx4 v{DK1}, s[28:31], s39 offen offset:1024 {POL} lds")
def dma_v(t):
    e(f"  s_add_u32 s38, s37, {81920+(t%5)*16384}")
    e("  s_mov_b32 m0, s38")
    e(f"  s_mov_b32 s39, {t*16384}")
    e(f"  buffer_load_dwordx4 v{DV}, s[32:35], s39 offen {POL} lds")
    e(f"  buffer_load_dwordx4 v{DV}, s[32:35], s39 offen offset:1024 {POL} lds")

WAITS = {0: 10, 5: 10, 6: 8, 7: 4, 8: 2, 9: 0}
def top(i):
    n = WAITS.get(i, 12)
    e(f"  ; ---- interval {i} ----")
    e(f"  s_waitcnt vmcnt({n})")
    e("  s_barrier")
    if i in (0, 1, 9): stamp()
    if i + 4 <= 7: dma_k(i + 4)
    if i + 2 <= 7: dma_v(i + 2)

def vread1(slot, s, idx):
    t, ee = idx >> 1, idx & 1
    bb = VF + (s & 1)*16 + t*4 + 2*ee
    base = VA
    if slot >= 65536:
        base = T0 + 0; slot -= 65536
    e(f"  ds_read_b64_tr_b16 v[{bb}:{bb+1}], v{base+t} offset:{slot+(16*s+8*ee)*256}")
def vreads(slot, s):
    for idx in range(8): vread1(slot, s, idx)
def pvm(s):
    for t in range(4):
        bb = VF + (s & 1)*16 + t*4
        e(f"  v_mfma_f32_32x32x16_bf16 v[{O0+16*t}:{O0+16*t+15}], v[{bb}:{bb+3}], v[{P0+4*s}:{P0+4*s+3}], v[{O0+16*t}:{O0+16*t+15}]")

def mfma_phase(tk, tv):
    if PRIO: e("  s_setprio 1")
    vs = None if tv is None else (tv % 5) * 16384
    if vs is not None and vs >= 65536:
        for t in range(4): e(f"  v_add_u32 v{T0+t}, 0x10000, v{VA+t}")
    if tk is not None:
        slot = (tk % 5) * 16384
        kreg = lambda st: KA + st
        if slot >= 65536:
            slot -= 65536
            kreg = lambda st: KA2[st]
        for st in range(8):
            e(f"  ds_read_b128 v[{KF+4*st}:{KF+4*st+3}], v{kreg(st)} offset:{slot}")
        for st in range(8):
            e("  s_waitcnt lgkmcnt(7)")
            c = "0" if st == 0 else f"v[{SA}:{SA+15}]"
            e(f"  v_mfma_f32_32x32x16_bf16 v[{SA}:{SA+15}], v[{KF+4*st}:{KF+4*st+3}], v[{Q0+4*st}:{Q0+4*st+3}], {c}")
            e(f"  ds_read_b128 v[{KF+4*st}:{KF+4*st+3}], v{kreg(st)} offset:{slot+8192}")
        for st in range(8):
            if tv is not None:
                e(f"  s_waitcnt lgkmcnt({min(7+st, 13)})" if st < 7 else "  s_waitcnt lgkmcnt(13)")
            else:
                e(f"  s_waitcnt lgkmcnt({7-st})")
            c = "0" if st == 0 else f"v[{SB}:{SB+15}]"
            e(f"  v_mfma_f32_32x32x16_bf16 v[{SB}:{SB+15}], v[{KF+4*st}:{KF+4*st+3}], v[{Q0+4*st}:{Q0+4*st+3}], {c}")
            if tv is not None:
                vread1(vs, st >> 2, 2*(st & 3)); vread1(vs, st >> 2, 2*(st & 3) + 1)
    elif tv is not None:
        vreads(vs, 0); vreads(vs, 1)
    if tv is not None:
        e("  s_waitcnt lgkmcnt(8)"); pvm(0)
        vreads(vs, 2)
        e("  s_waitcnt lgkmcnt(8)"); pvm(1)
        vreads(vs, 3)
        e("  s_waitcnt lgkmcnt(8)"); pvm(2)
        e("  s_waitcnt lgkmcnt(0)"); pvm(3)
    if PRIO: e("  s_setprio 0")

def valu_phase(lab):
    a = lambda i: f"v{SA+i}"
    b = lambda i: f"v{SB+i}"
    t_ = lambda i: f"v{T0+i}"
    e(f"  v_max3_f32 {t_(0)}, {a(0)}, {a(1)}, {a(2)}")
    e(f"  v_max3_f32 {t_(1)}, {a(3)}, {a(4)}, {a(5)}")
    e(f"  v_max3_f32 {t_(2)}, {a(6)}, {a(7)}, {a(8)}")
    e(f"  v_max3_f32 {t_(3)}, {a(9)}, {a(10)}, {a(11)}")
    e(f"  v_max3_f32 {t_(4)}, {a(12)}, {a(13)}, {a(14)}")
    e(f"  v_max3_f32 {t_(0)}, {t_(0)}, {t_(1)}, {a(15)}")
    e(f"  v_max3_f32 {t_(2)}, {t_(2)}, {t_(3)}, {t_(4)}")
    e(f"  v_max3_f32 {t_(1)}, {b(0)}, {b(1)}, {b(2)}")
    e(f"  v_max3_f32 {t_(3)}, {b(3)}, {b(4)}, {b(5)}")
    e(f"  v_max3_f32 {t_(4)}, {b(6)}, {b(7)}, {b(8)}")
    e(f"  v_max3_f32 {t_(5)}, {b(9)}, {b(10)}, {b(11)}")
    e(f"  v_max3_f32 {t_(6)}, {b(12)}, {b(13)}, {b(14)}")
    e(f"  v_max3_f32 {t_(0)}, {t_(0)}, {t_(2)}, {b(15)}")
    e(f"  v_max3_f32 {t_(1)}, {t_(1)}, {t_(3)}, {t_(4)}")
    e(f"  v_max3_f32 {t_(0)}, {t_(0)}, {t_(5)}, {t_(6)}")
    e(f"  v_max_f32 {t_(0)}, {t_(0)}, {t_(1)}")
    e(f"  v_mov_b32 {t_(1)}, {t_(0)}")
    e(f"  v_add_f32 {t_(2)}, s57, v{VM}")
    e("  s_nop 0")
    e(f"  v_permlane32_swap_b32 {t_(0)}, {t_(1)}")
    e(f"  v_max_f32 {t_(0)}, {t_(0)}, {t_(1)}")
    e(f"  v_mul_f32 {t_(0)}, s41, {t_(0)}")
    e(f"  v_cmp_gt_f32 vcc, {t_(0)}, {t_(2)}")
    e("  s_nop 1")
    e(f"  s_cbranch_vccz L_skip_{lab}")
    e(f"  v_max_f32 {t_(0)}, v{VM}, {t_(0)}")
    e(f"  v_sub_f32 {t_(1)}, v{VM}, {t_(0)}")
    e(f"  v_exp_f32 {t_(1)}, {t_(1)}")
    e(f"  v_mov_b32 v{VM}, {t_(0)}")
    for r in range(64):
        e(f"  v_mul_f32 v{O0+r}, {t_(1)}, v{O0+r}")
    e(f"  v_mul_f32 v{VL}, {t_(1)}, v{VL}")
    e(f"L_skip_{lab}:")
    for i in range(16):
        e(f"  v_fma_f32 {a(i)}, {a(i)}, s41, -v{VM}")
    for i in range(16):
        e(f"  v_exp_f32 {a(i)}, {a(i)}")
    for i in range(16):
        e(f"  v_fma_f32 {b(i)}, {b(i)}, s41, -v{VM}")
    for i in range(16):
        e(f"  v_exp_f32 {b(i)}, {b(i)}")
        if i % 2 == 1:
            j = i - 1
            e(f"  v_add_f32 {t_(j%4)}, {a(j)}, {a(j+1)}")
            e(f"  v_cvt_pk_bf16_f32 v{P0+j//2}, {a(j)}, {a(j+1)}")
            e(f"  v_add_f32 v{VL}, v{VL}, {t_(j%4)}")
    for i in range(0, 16, 2):
        e(f"  v_add_f32 {t_(i%4)}, {b(i)}, {b(i+1)}")
        e(f"  v_cvt_pk_bf16_f32 v{P0+8+i//2}, {b(i)}, {b(i+1)}")
        e(f"  v_add_f32 v{VL}, v{VL}, {t_(i%4)}")

def kernel():
    e(f".globl {NAME}")
    e(".p2align 8")
    e(f".type {NAME},@function")
    e(f"{NAME}:")
    e("  s_cmp_ge_u32 s2, 256")
    e("  s_cbranch_scc1 L_done")
    if DIAG:
        e("  s_memtime s[90:91]")
        e("  s_memrealtime s[92:93]")
    e("  s_load_dwordx4 s[4:7], s[0:1], 0      ; q, k")
    e("  s_load_dwordx2 s[8:9], s[0:1], 16     ; v")
    e("  s_load_dwordx4 s[12:15], s[0:1], 24")
    e("  s_load_dwordx2 s[10:11], s[0:1], 40   ; ws")
    e("  v_lshrrev_b32 v1, 6, v0")
    e("  v_and_b32 v2, 63, v0                  ; lane")
    e("  v_readfirstlane_b32 s20, v1")
    e("  s_nop 3")
    e("  s_and_b32 s21, s20, 3                 ; q tile")
    e("  s_lshr_b32 s22, s20, 2                ; group")
    e("  s_lshr_b32 s58, s2, 2                 ; g")
    e("  s_and_b32 s59, s2, 3                  ; split")
    e("  v_and_b32 v3, 31, v2                  ; l&31")
    e("  v_lshrrev_b32 v4, 5, v2               ; h")
    e("  v_and_b32 v5, 15, v2                  ; i = l&15")
    e("  v_lshrrev_b32 v6, 4, v2               ; g = l>>4")
    e("  s_lshl_b32 s36, s20, 3")
    e("  v_add_u32 v8, s36, v6")
    e("  v_and_b32 v9, 15, v8")
    e("  v_xor_b32 v9, v9, v5")
    e(f"  v_lshlrev_b32 v{DK0}, 8, v8")
    e(f"  v_lshl_add_u32 v{DK0}, v9, 4, v{DK0}")
    e("  v_add_u32 v10, 4, v8")
    e("  v_and_b32 v9, 15, v10")
    e("  v_xor_b32 v9, v9, v5")
    e(f"  v_lshlrev_b32 v{DK1}, 8, v10")
    e(f"  v_lshl_add_u32 v{DK1}, v9, 4, v{DK1}")
    e(f"  v_subrev_u32 v{DK1}, 1024, v{DK1}")
    e("  v_lshlrev_b32 v9, 2, v6")
    e("  v_xor_b32 v9, v9, v5")
    e(f"  v_lshlrev_b32 v{DV}, 8, v8")
    e(f"  v_lshl_add_u32 v{DV}, v9, 4, v{DV}")
    e("  s_lshl_b32 s37, s20, 11")
    e("  s_lshl_b32 s23, s2, 17")
    e("  s_waitcnt lgkmcnt(0)")
    if DIAG: e("  s_memtime s[86:87]")
    e("  s_lshr_b32 s24, s58, 2")
    e("  s_lshl_b32 s24, s24, 2")
    e("  s_add_u32 s24, s24, 192")
    e("  s_and_b32 s65, s58, 3")
    e("  s_lshl_b32 s65, s65, 3")
    e("  s_add_u32 s60, s14, s24")
    e("  s_addc_u32 s61, s15, 0")
    e("  s_mov_b32 s62, 4")
    e("  s_mov_b32 s63, 0x00020000")
    e("  v_lshlrev_b32 v15, 2, v2")
    e("  s_cmp_lg_u32 s20, 0")
    e("  s_cbranch_scc1 L_noarrive")
    e("  s_lshl_b32 s24, s2, 7")
    e(f"  s_add_u32 s24, s24, {FLAG_OFF}")
    e("  s_add_u32 s16, s10, s24")
    e("  s_addc_u32 s17, s11, 0")
    e("  s_mov_b32 s18, 4")
    e("  s_mov_b32 s19, 0x00020000")
    e("  v_mov_b32 v14, 0")
    e("  buffer_store_dword v14, v15, s[16:19], 0 offen sc1")
    e("L_noarrive:")
    e("  s_add_u32 s28, s6, s23")
    e("  s_addc_u32 s29, s7, 0")
    e("  s_mov_b32 s30, 131072")
    e("  s_mov_b32 s31, 0x00020000")
    if DIAG: e("  s_memtime s[70:71]")
    dma_k(0)
    if DIAG: e("  s_memtime s[72:73]")
    e("  s_add_u32 s32, s8, s23")
    e("  s_addc_u32 s33, s9, 0")
    e("  s_mov_b32 s34, 131072")
    e("  s_mov_b32 s35, 0x00020000")
    e("  s_lshl_b32 s23, s58, 2")
    e("  s_add_u32 s23, s23, s21")
    e("  s_lshl_b32 s23, s23, 13")
    e("  s_add_u32 s24, s4, s23")
    e("  s_addc_u32 s25, s5, 0")
    e("  s_mov_b32 s26, 8192")
    e("  s_mov_b32 s27, 0x00020000")
    e("  v_lshlrev_b32 v7, 8, v3")
    e("  v_lshl_add_u32 v7, v4, 4, v7")
    for st in range(8):
        e(f"  buffer_load_dwordx4 v[{Q0+4*st}:{Q0+4*st+3}], v7, s[24:27], 0 offen offset:{32*st}")
    if DIAG: e("  s_memtime s[74:75]")
    dma_k(1)
    if DIAG: e("  s_memtime s[76:77]")
    dma_v(0)
    if DIAG: e("  s_memtime s[78:79]")
    dma_k(2); dma_v(1); dma_k(3)
    if DIAG: e("  s_memtime s[84:85]")
    e("  v_lshlrev_b32 v8, 8, v3")
    for st in range(8):
        e(f"  v_add_u32 v9, {2*st}, v4")
        e("  v_xor_b32 v9, v9, v5")
        e(f"  v_lshl_add_u32 v{KA+st}, v9, 4, v8")
    e("  v_lshrrev_b32 v9, 2, v5")
    e("  v_lshl_add_u32 v10, v4, 2, v9")
    e("  v_lshlrev_b32 v10, 8, v10")
    e("  v_add_u32 v10, 0x14000, v10")
    e("  v_and_b32 v11, 1, v6")
    e("  v_lshl_add_u32 v10, v11, 5, v10")
    e("  v_and_b32 v11, 3, v5")
    e("  v_lshl_add_u32 v10, v11, 3, v10")
    for t in range(4):
        e(f"  v_xor_b32 v11, {t}, v9")
        e(f"  v_lshl_add_u32 v{VA+t}, v11, 6, v10")
    for st in range(8):
        e(f"  v_add_u32 v{KA2[st]}, 0x10000, v{KA+st}")
    for r in range(64):
        e(f"  v_mov_b32 v{O0+r}, 0")
    e(f"  v_mov_b32 v{VM}, 0xff800000")
    e(f"  v_mov_b32 v{VL}, 0")
    e("  s_mov_b32 s41, 0x3e0293ee")
    e("  s_mov_b32 s57, 0x41000000             ; T = 8")
    stamp()
    e("  s_cmp_ge_u32 s22, 1")
    e("  s_cbranch_scc1 L_groupB")
    e("  ; ---- interval 0 (A) ----")
    e("  s_waitcnt vmcnt(10)")
    e("  s_cmp_lg_u32 s20, 0")
    e("  s_cbranch_scc1 L_noarr2")
    e("  s_lshl_b32 s24, 1, s65")
    e("  v_mov_b32 v14, s24")
    e("  buffer_atomic_add v14, v15, s[60:63], 0 offen sc1")
    e("L_noarr2:")
    e("  s_barrier")
    if DIAG: e("  s_memtime s[88:89]")
    stamp()
    dma_k(4); dma_v(2)
    mfma_phase(0, None)
    for j in range(4):
        top(2*j+1); valu_phase(f"a{j}")
        top(2*j+2); mfma_phase(2*j+2 if j < 3 else None, 2*j)
    t_ = lambda i: f"v{T0+i}"
    e(f"  v_mov_b32 {t_(1)}, v{VL}")
    e("  v_lshlrev_b32 v8, 4, v2")
    e("  s_lshl_b32 s43, s21, 14")
    e("  v_add_u32 v9, s43, v8")
    e("  s_lshl_b32 s43, s21, 9")
    e("  v_lshlrev_b32 v10, 3, v2")
    e("  v_add_u32 v11, s43, v10")
    e(f"  v_add_u32 v11, {XLDS+64}, v11")
    e(f"  v_permlane32_swap_b32 v{VL}, {t_(1)}")
    e(f"  v_add_f32 v{VL}, v{VL}, {t_(1)}")
    e(f"  v_mov_b32 v12, v{VM}")
    e(f"  v_mov_b32 v13, v{VL}")
    e("  s_nop 7")
    e("  ds_write_b64 v11, v[12:13]")
    for qd in range(16):
        e(f"  ds_write_b128 v9, v[{O0+4*qd}:{O0+4*qd+3}] offset:{1024*qd}")
    e("  s_cmp_lg_u32 s20, 0")
    e("  s_cbranch_scc1 L_nardA")
    e("  buffer_load_dword v104, v15, s[60:63], 0 offen sc1")
    e("  s_waitcnt vmcnt(0)")
    e("  v_readfirstlane_b32 s46, v104")
    e("  s_nop 3")
    e("  s_lshr_b32 s46, s46, s65")
    e("  s_and_b32 s46, s46, 0xff")
    if FORCE_ABANDON:
        e("  s_cmp_lg_u32 s59, 1")
    else:
        e("  s_cmp_lg_u32 s46, 4")
    e("  s_cselect_b32 s47, 2, 1")
    e(f"  v_mov_b32 v105, {XLDS}")
    e("  v_mov_b32 v106, s47")
    e("  ds_write_b32 v105, v106")
    e("L_nardA:")
    e("  s_waitcnt lgkmcnt(0)")
    top(9)
    e(f"  v_mov_b32 v105, {XLDS}")
    e("  ds_read_b32 v106, v105")
    e("  s_waitcnt lgkmcnt(0)")
    e("  v_readfirstlane_b32 s47, v106")
    e("  s_branch L_epi")
    e("L_groupB:")
    nstamp[0] = 1
    top(0)
    top(1); mfma_phase(1, None)
    for j in range(4):
        top(2*j+2); valu_phase(f"b{j}")
        top(2*j+3)
        if j == 3:
            e("  v_lshlrev_b32 v8, 4, v2")
            e("  s_lshl_b32 s43, s21, 14")
            e("  v_add_u32 v9, s43, v8")
            e("  s_lshl_b32 s43, s21, 9")
            e("  v_lshlrev_b32 v10, 3, v2")
            e("  v_add_u32 v11, s43, v10")
            e(f"  v_add_u32 v11, {XLDS+64}, v11")
            e(f"  v_mov_b32 v105, {XLDS}")
            e("  ds_read_b32 v106, v105")
            e("  ds_read_b64 v[12:13], v11")
            for qd in range(16):
                rr = (112 + 4*qd) if qd < 8 else (48 + 4*(qd-8))
                e(f"  ds_read_b128 v[{rr}:{rr+3}], v9 offset:{1024*qd}")
                if qd == 7: e("  s_waitcnt lgkmcnt(4)")
        mfma_phase(2*j+3 if j < 3 else None, 2*j+1)
    t_ = lambda i: f"v{T0+i}"
    e(f"  v_mov_b32 {t_(1)}, v{VL}")
    e("  v_readfirstlane_b32 s47, v106")
    e(f"  v_max_f32 v100, v{VM}, v12")
    e(f"  v_permlane32_swap_b32 v{VL}, {t_(1)}")
    e(f"  v_add_f32 v{VL}, v{VL}, {t_(1)}")
    e(f"  v_sub_f32 v101, v{VM}, v100")
    e("  v_sub_f32 v102, v12, v100")
    e("  v_exp_f32 v101, v101                   ; fb")
    e("  v_exp_f32 v102, v102                   ; fa")
    e("  s_nop 0")
    e(f"  v_mul_f32 v103, v101, v{VL}")
    e("  v_fma_f32 v101, v101, 1.0, 0") if False else None
    e("  v_fma_f32 v13, v102, v13, v103         ; L")
    e("  v_mov_b32 v12, v100                    ; M")
    e("  s_lshl_b32 s46, s2, 15")
    e("  s_add_u32 s48, s10, s46")
    e("  s_addc_u32 s49, s11, 0")
    e("  s_mov_b32 s50, 32768")
    e("  s_mov_b32 s51, 0x00020000")
    e("  s_lshl_b32 s40, s21, 13                ; j*8192")
    e("  s_lshl_b32 s46, s2, 10")
    e(f"  s_add_u32 s46, s46, {ML_OFF}")
    e("  s_lshl_b32 s45, s21, 8")
    e("  s_add_u32 s46, s46, s45")
    e("  s_add_u32 s52, s10, s46")
    e("  s_addc_u32 s53, s11, 0")
    e("  s_mov_b32 s54, 256")
    e("  s_mov_b32 s55, 0x00020000")
    e("  v_lshlrev_b32 v14, 3, v2")
    e(f"  buffer_store_dwordx2 v[12:13], v14, s[52:55], 0 offen {PPOL}")
    for r in range(64):
        ar = (112 + r) if r < 32 else (48 + r - 32)
        e(f"  v_mul_f32 v{O0+r}, v101, v{O0+r}")
        e(f"  v_fma_f32 v{O0+r}, v102, v{ar}, v{O0+r}")
    e("  s_cmp_lg_u32 s59, s21")
    e("  s_cbranch_scc1 L_bst")
    for qd in range(16):
        e(f"  ds_write_b128 v9, v[{O0+4*qd}:{O0+4*qd+3}] offset:{1024*qd}")
    e("  ds_write_b64 v11, v[12:13]")
    e("  s_cmp_eq_u32 s47, 1")
    e("  s_cbranch_scc1 L_bnost")
    e("L_bst:")
    for r in range(32):
        e(f"  v_cvt_pk_bf16_f32 v{112+r}, v{O0+2*r}, v{O0+2*r+1}")
    for p in range(8):
        e(f"  s_add_u32 s46, s40, {p*1024}")
        e(f"  buffer_store_dwordx4 v[{112+4*p}:{115+4*p}], v8, s[48:51], s46 offen {PPOL}")
    e("L_bnost:")
    e("L_epi:")
    stamp()
    if DIAG: e("  s_memtime s[98:99]")
    e("  v_lshlrev_b32 v8, 4, v2")
    e("  s_lshl_b32 s40, s20, 10               ; w*1024")
    stamp()
    e("  s_waitcnt vmcnt(0) lgkmcnt(0)")
    stamp()
    e("  s_barrier")
    stamp()
    e("  s_cmp_lg_u32 s20, 0")
    e("  s_cbranch_scc1 L_w_notzero")
    e("  v_mov_b32 v104, s47")
    e("  buffer_store_dword v104, v15, s[16:19], 0 offen sc1")
    e("  s_cmp_eq_u32 s47, 2")
    e("  s_cbranch_scc1 L_w_notzero")
    e("  s_lshl_b32 s24, s58, 9")
    e(f"  s_add_u32 s24, s24, {FLAG_OFF}")
    e("  s_add_u32 s16, s10, s24")
    e("  s_addc_u32 s17, s11, 0")
    e("  s_mov_b32 s18, 512")
    e("  v_lshlrev_b32 v105, 7, v2")
    e("L_poll:")
    e("  buffer_load_dword v104, v105, s[16:19], 0 offen sc1")
    e("  s_waitcnt vmcnt(0)")
    e("  v_readlane_b32 s24, v104, 0")
    e("  v_readlane_b32 s25, v104, 1")
    e("  v_readlane_b32 s26, v104, 2")
    e("  v_readlane_b32 s27, v104, 3")
    e("  s_nop 3")
    e("  s_min_u32 s44, s24, s25")
    e("  s_min_u32 s45, s26, s27")
    e("  s_min_u32 s44, s44, s45")
    e("  s_cmp_eq_u32 s44, 0")
    e("  s_cbranch_scc0 L_polldone")
    e("  s_sleep 1")
    e("  s_branch L_poll")
    e("L_polldone:")
    e("  s_mov_b32 s44, 0")
    e("  s_mov_b32 s45, 0")
    for sp, r in enumerate(("s24", "s25", "s26", "s27")):
        e(f"  s_cmp_eq_u32 {r}, 2")
        e(f"  s_cselect_b32 s46, {1 << sp}, 0")
        e(f"  s_cselect_b32 s42, 0, {1 << sp}")
        e("  s_or_b32 s44, s44, s46")
        e("  s_or_b32 s45, s45, s42")
    e("  s_ff1_i32_b32 s46, s45")
    e("  s_cmp_eq_u32 s46, s59")
    e("  s_cselect_b32 s42, s44, 0")
    e(f"  v_mov_b32 v105, {XLDS+4}")
    e("  v_mov_b32 v106, s42")
    e("  ds_write_b32 v105, v106")
    e("  s_waitcnt lgkmcnt(0)")
    e("L_w_notzero:")
    e("  s_barrier")
    e("  s_cmp_eq_u32 s47, 2")
    e("  s_cbranch_scc1 L_done")
    stamp()
    e("  s_lshl_b32 s46, s58, 17")
    e("  s_add_u32 s48, s10, s46")
    e("  s_addc_u32 s49, s11, 0")
    e("  s_mov_b32 s50, 131072")
    e("  s_mov_b32 s51, 0x00020000")
    e("  s_lshl_b32 s46, s58, 12")
    e(f"  s_add_u32 s46, s46, {ML_OFF}")
    e("  s_add_u32 s52, s10, s46")
    e("  s_addc_u32 s53, s11, 0")
    e("  s_mov_b32 s54, 4096")
    e("  s_mov_b32 s55, 0x00020000")
    e("  v_and_b32 v20, 31, v2")
    e("  v_lshlrev_b32 v20, 3, v20")
    e("  s_lshl_b32 s44, s59, 8                 ; j*256")
    e("  s_lshl_b32 s45, s59, 13")
    e("  s_add_u32 s45, s45, s40                ; j*8192 + w*1024")
    for k in range(1, 4):
        e(f"  s_add_u32 s46, s59, {k}")
        e("  s_and_b32 s46, s46, 3")
        e("  s_lshl_b32 s24, s46, 10")
        e("  s_add_u32 s24, s24, s44")
        e(f"  buffer_load_dwordx2 v[{22+2*k}:{23+2*k}], v20, s[52:55], s24 offen {LPOL}")
        e("  s_lshl_b32 s24, s46, 15")
        e("  s_add_u32 s24, s24, s45")
        e(f"  buffer_load_dwordx4 v[{28+4*k}:{31+4*k}], v8, s[48:51], s24 offen {LPOL}")
    e(f"  v_mov_b32 v105, {XLDS+4}")
    e("  ds_read_b32 v106, v105")
    e("  s_lshl_b32 s46, s59, 14")
    e("  s_lshl_b32 s45, s20, 11")
    e("  s_add_u32 s46, s46, s45")
    e("  v_add_u32 v9, s46, v8")
    e("  ds_read_b128 v[108:111], v9")
    e("  ds_read_b128 v[112:115], v9 offset:1024")
    e("  s_lshl_b32 s46, s59, 9")
    e("  v_lshlrev_b32 v10, 3, v2")
    e("  v_add_u32 v10, s46, v10")
    e(f"  v_add_u32 v10, {XLDS+64}, v10")
    e("  ds_read_b64 v[116:117], v10")
    e("  v_lshrrev_b32 v6, 5, v2")
    e("  v_and_b32 v7, 31, v2")
    e("  v_lshlrev_b32 v7, 8, v7")
    e("  v_lshl_add_u32 v7, v6, 4, v7")
    e("  s_lshl_b32 s46, s20, 5")
    e("  v_add_u32 v7, s46, v7")
    e("  s_mov_b32 s61, 0xffff0000")
    e("  s_waitcnt lgkmcnt(0)")
    e("  v_readfirstlane_b32 s42, v106")
    def fin(ms, ls, first_fp32, srcs, jreg):
        e(f"  v_max_f32 v16, v{ms[0]}, v{ms[1]}")
        e(f"  v_max3_f32 v16, v16, v{ms[2]}, v{ms[3]}")
        for m in ms: e(f"  v_sub_f32 v{m}, v{m}, v16")
        for m in ms: e(f"  v_exp_f32 v{m}, v{m}")
        e("  s_nop 0")
        e(f"  v_mul_f32 v17, v{ms[0]}, v{ls[0]}")
        for i in range(1, 4): e(f"  v_fma_f32 v17, v{ms[i]}, v{ls[i]}, v17")
        e("  v_rcp_f32 v17, v17")
        e("  s_nop 0")
        for m in ms: e(f"  v_mul_f32 v{m}, v{m}, v17")
        if first_fp32:
            for r in range(8): e(f"  v_mul_f32 v{108+r}, v{ms[0]}, v{108+r}")
        for idx, (mi, src) in enumerate(srcs):
            for d in range(4):
                e(f"  v_lshlrev_b32 v18, 16, v{src+d}")
                e(f"  v_and_b32 v19, s61, v{src+d}")
                if idx == 0 and not first_fp32:
                    e(f"  v_mul_f32 v{108+2*d}, v{mi}, v18")
                    e(f"  v_mul_f32 v{109+2*d}, v{mi}, v19")
                else:
                    e(f"  v_fma_f32 v{108+2*d}, v{mi}, v18, v{108+2*d}")
                    e(f"  v_fma_f32 v{109+2*d}, v{mi}, v19, v{109+2*d}")
        for jj in range(4):
            e(f"  v_cvt_pk_bf16_f32 v{64+jj}, v{108+2*jj}, v{109+2*jj}")
        e("  s_nop 1")
        e("  v_permlane32_swap_b32 v64, v66")
        e("  v_permlane32_swap_b32 v65, v67")
        e("  s_lshl_b32 s46, s58, 2")
        e(f"  s_add_u32 s46, s46, {jreg}")
        e("  s_lshl_b32 s46, s46, 13")
        e("  s_add_u32 s28, s12, s46")
        e("  s_addc_u32 s29, s13, 0")
        e("  s_mov_b32 s30, 8192")
        e("  s_mov_b32 s31, 0x00020000")
        e("  buffer_store_dwordx4 v[64:67], v7, s[28:31], 0 offen")
    e("  s_waitcnt vmcnt(0)")
    fin([116, 24, 26, 28], [117, 25, 27, 29], True, [(24, 32), (26, 36), (28, 40)], "s59")
    e("L_finloop:")
    e("  s_cmp_eq_u32 s42, 0")
    e("  s_cbranch_scc1 L_finend")
    e("  s_ff1_i32_b32 s44, s42                ; j")
    e("  s_lshl_b32 s45, 1, s44")
    e("  s_andn2_b32 s42, s42, s45")
    e("  s_lshl_b32 s45, s44, 8")
    for sp in range(4):
        e(f"  buffer_load_dwordx2 v[{24+2*sp}:{25+2*sp}], v20, s[52:55], s45 offen offset:{1024*sp} {LPOL}")
    e("  s_lshl_b32 s45, s44, 13")
    e("  s_add_u32 s45, s45, s40")
    for sp in range(4):
        e(f"  buffer_load_dwordx4 v[{32+4*sp}:{35+4*sp}], v8, s[48:51], s45 offen {LPOL}")
        if sp < 3: e("  s_add_u32 s45, s45, 32768")
    e("  s_waitcnt vmcnt(0)")
    fin([24, 26, 28, 30], [25, 27, 29, 31], False, [(24, 32), (26, 36), (28, 40), (30, 44)], "s44")
    e("  s_branch L_finloop")
    e("L_finend:")
    if DIAG:
        e("  s_waitcnt vmcnt(0)")
        e("  s_memtime s[94:95]")
        e("  s_memrealtime s[96:97]")
        e("  s_waitcnt lgkmcnt(0)")
        e("  s_sub_u32 s94, s94, s90")
        e("  s_sub_u32 s96, s96, s92")
        e("  s_cmp_lg_u32 s20, 0")
        e("  s_cbranch_scc1 L_done")
        e("  s_cmp_ge_u32 s2, 2")
        e("  s_cbranch_scc1 L_done")
        e("  s_lshl_b32 s46, s2, 5")
        e("  s_add_u32 s48, s14, s46")
        e("  s_addc_u32 s49, s15, 0")
        e("  s_mov_b32 s50, 32")
        e("  s_mov_b32 s51, 0x00020000")
        for i_, r in enumerate((86, 70, 72, 74, 76, 78, 84, 88)):
            e(f"  s_sub_u32 s{r}, s{r}, s90")
            e(f"  v_mov_b32 v{4+i_}, s{r}")
        e("  v_lshlrev_b32 v3, 5, v2")
        e("  buffer_store_dwordx4 v[4:7], v3, s[48:51], 0 offen")
        e("  buffer_store_dwordx4 v[8:11], v3, s[48:51], 0 offen offset:16")
    if STAMP:
        e("  s_waitcnt vmcnt(0)")
        stamp()
        e("  s_waitcnt lgkmcnt(0)")
        e("  s_lshl_b32 s46, s2, 3")
        e("  s_add_u32 s46, s46, s20")
        e("  s_lshl_b32 s46, s46, 8")
        e("  s_add_u32 s46, s46, 0x2000000")
        e("  s_add_u32 s48, s10, s46")
        e("  s_addc_u32 s49, s11, 0")
        e("  s_mov_b32 s50, 256")
        e("  s_mov_b32 s51, 0x00020000")
        e("  v_mov_b32 v3, 0")
        for i_ in range(nstamp[0]):
            e(f"  v_mov_b32 v4, s{66+2*i_}")
            e(f"  v_mov_b32 v5, s{67+2*i_}")
            e(f"  buffer_store_dwordx2 v[4:5], v3, s[48:51], 0 offen offset:{8*i_}")
    e("L_done:")
    e("  s_endpgm")

e(HEADER.rstrip())
e(f"; @launch grid=(256,1,1) block=(512,1,1) lds=163840")
e('.amdgcn_target "amdgcn-amd-amdhsa--gfx950"')
e(".text")
kernel()
e('.section .rodata,"a"')
e(".p2align 6")
e(f".amdhsa_kernel {NAME}")
e("  .amdhsa_next_free_vgpr 256")
e(f"  .amdhsa_next_free_sgpr {102 if (STAMP or DIAG) else 72}")
e("  .amdhsa_accum_offset 256")
e("  .amdhsa_group_segment_fixed_size 0")
e("  .amdhsa_kernarg_size 48")
e("  .amdhsa_user_sgpr_count 2")
e("  .amdhsa_user_sgpr_kernarg_segment_ptr 1")
e("  .amdhsa_system_sgpr_workgroup_id_x 1")
e(".end_amdhsa_kernel")
open(sys.argv[1] if len(sys.argv) > 1 else "standalone__gqa_softmax__sampling.s", "w").write("\n".join(out) + "\n")
```

```python
import sys, os
POL = os.environ.get("POL", "nt")
PPOL = os.environ.get("PPOL", "sc1")
LPOL = os.environ.get("LPOL", "sc1")
STAMP = int(os.environ.get("STAMP", "0"))
PRIO = int(os.environ.get("PRIO", "1"))
nstamp = [0]
def stamp():
    if STAMP:
        i = nstamp[0]; nstamp[0] += 1
        e(f"  s_memtime s[{66+2*i}:{67+2*i}]")

HEADER = """; Kernarg layout for this problem (48 bytes, ptrs only, base s[0:1]):
"""
out = []
def e(s=""):
    out.append(s)

Q0 = 16; KF = 48; VF = 80; SA = 112; SB = 128; P0 = 144; O0 = 160
KA2 = [3, 4, 5, 6, 7, 9, 10, 11]
KA = 224; VA = 232; DK0, DK1, DV = 236, 237, 238
VM, VL = 239, 240
T0 = 241
ML_OFF = 16 * 1024 * 1024
XLDS = 131072
NAME = "standalone__gqa_softmax__sampling_kernel"

def dma_k(t):
    e(f"  s_add_u32 s38, s37, {(t%5)*16384}")
    e("  s_mov_b32 m0, s38")
    e(f"  s_mov_b32 s39, {t*16384}")
    e(f"  buffer_load_dwordx4 v{DK0}, s[28:31], s39 offen {POL} lds")
    e(f"  buffer_load_dwordx4 v{DK1}, s[28:31], s39 offen offset:1024 {POL} lds")
def dma_v(t):
    e(f"  s_add_u32 s38, s37, {81920+(t%5)*16384}")
    e("  s_mov_b32 m0, s38")
    e(f"  s_mov_b32 s39, {t*16384}")
    e(f"  buffer_load_dwordx4 v{DV}, s[32:35], s39 offen {POL} lds")
    e(f"  buffer_load_dwordx4 v{DV}, s[32:35], s39 offen offset:1024 {POL} lds")

WAITS = {0: 14, 5: 10, 6: 8, 7: 4, 8: 2, 9: 0}
def top(i):
    n = WAITS.get(i, 12)
    e(f"  ; ---- interval {i} ----")
    e(f"  s_waitcnt vmcnt({n})")
    e("  s_barrier")
    if i in (0, 1, 9): stamp()
    if i + 4 <= 7: dma_k(i + 4)
    if i + 2 <= 7: dma_v(i + 2)

def vread1(slot, s, idx):
    t, ee = idx >> 1, idx & 1
    bb = VF + (s & 1)*16 + t*4 + 2*ee
    base = VA
    if slot >= 65536:
        base = T0; slot -= 65536
    e(f"  ds_read_b64_tr_b16 v[{bb}:{bb+1}], v{base+t} offset:{slot+(16*s+8*ee)*256}")
def vreads(slot, s):
    for idx in range(8): vread1(slot, s, idx)
def pvm(s):
    for t in range(4):
        bb = VF + (s & 1)*16 + t*4
        e(f"  v_mfma_f32_32x32x16_bf16 v[{O0+16*t}:{O0+16*t+15}], v[{bb}:{bb+3}], v[{P0+4*s}:{P0+4*s+3}], v[{O0+16*t}:{O0+16*t+15}]")

def mfma_phase(tk, tv):
    if PRIO: e("  s_setprio 1")
    vs = None if tv is None else (tv % 5) * 16384
    if vs is not None and vs >= 65536:
        for t in range(4): e(f"  v_add_u32 v{T0+t}, 0x10000, v{VA+t}")
    if tk is not None:
        slot = (tk % 5) * 16384
        kreg = lambda st: KA + st
        if slot >= 65536:
            slot -= 65536
            kreg = lambda st: KA2[st]
        for st in range(8):
            e(f"  ds_read_b128 v[{KF+4*st}:{KF+4*st+3}], v{kreg(st)} offset:{slot}")
        for st in range(8):
            e("  s_waitcnt lgkmcnt(7)")
            c = "0" if st == 0 else f"v[{SA}:{SA+15}]"
            e(f"  v_mfma_f32_32x32x16_bf16 v[{SA}:{SA+15}], v[{KF+4*st}:{KF+4*st+3}], v[{Q0+4*st}:{Q0+4*st+3}], {c}")
            e(f"  ds_read_b128 v[{KF+4*st}:{KF+4*st+3}], v{kreg(st)} offset:{slot+8192}")
        for st in range(8):
            if tv is not None:
                e(f"  s_waitcnt lgkmcnt({min(7+st, 13)})")
            else:
                e(f"  s_waitcnt lgkmcnt({7-st})")
            c = "0" if st == 0 else f"v[{SB}:{SB+15}]"
            e(f"  v_mfma_f32_32x32x16_bf16 v[{SB}:{SB+15}], v[{KF+4*st}:{KF+4*st+3}], v[{Q0+4*st}:{Q0+4*st+3}], {c}")
            if tv is not None:
                vread1(vs, st >> 2, 2*(st & 3)); vread1(vs, st >> 2, 2*(st & 3) + 1)
    elif tv is not None:
        vreads(vs, 0); vreads(vs, 1)
    if tv is not None:
        e("  s_waitcnt lgkmcnt(8)"); pvm(0)
        vreads(vs, 2)
        e("  s_waitcnt lgkmcnt(8)"); pvm(1)
        vreads(vs, 3)
        e("  s_waitcnt lgkmcnt(8)"); pvm(2)
        e("  s_waitcnt lgkmcnt(0)"); pvm(3)
    if PRIO: e("  s_setprio 0")

def valu_phase(lab):
    a = lambda i: f"v{SA+i}"
    b = lambda i: f"v{SB+i}"
    t_ = lambda i: f"v{T0+i}"
    e(f"  v_max3_f32 {t_(0)}, {a(0)}, {a(1)}, {a(2)}")
    e(f"  v_max3_f32 {t_(1)}, {a(3)}, {a(4)}, {a(5)}")
    e(f"  v_max3_f32 {t_(2)}, {a(6)}, {a(7)}, {a(8)}")
    e(f"  v_max3_f32 {t_(3)}, {a(9)}, {a(10)}, {a(11)}")
    e(f"  v_max3_f32 {t_(4)}, {a(12)}, {a(13)}, {a(14)}")
    e(f"  v_max3_f32 {t_(0)}, {t_(0)}, {t_(1)}, {a(15)}")
    e(f"  v_max3_f32 {t_(2)}, {t_(2)}, {t_(3)}, {t_(4)}")
    e(f"  v_max3_f32 {t_(1)}, {b(0)}, {b(1)}, {b(2)}")
    e(f"  v_max3_f32 {t_(3)}, {b(3)}, {b(4)}, {b(5)}")
    e(f"  v_max3_f32 {t_(4)}, {b(6)}, {b(7)}, {b(8)}")
    e(f"  v_max3_f32 {t_(5)}, {b(9)}, {b(10)}, {b(11)}")
    e(f"  v_max3_f32 {t_(6)}, {b(12)}, {b(13)}, {b(14)}")
    e(f"  v_max3_f32 {t_(0)}, {t_(0)}, {t_(2)}, {b(15)}")
    e(f"  v_max3_f32 {t_(1)}, {t_(1)}, {t_(3)}, {t_(4)}")
    e(f"  v_max3_f32 {t_(0)}, {t_(0)}, {t_(5)}, {t_(6)}")
    e(f"  v_max_f32 {t_(0)}, {t_(0)}, {t_(1)}")
    e(f"  v_mov_b32 {t_(1)}, {t_(0)}")
    e(f"  v_add_f32 {t_(2)}, s57, v{VM}")
    e("  s_nop 0")
    e(f"  v_permlane32_swap_b32 {t_(0)}, {t_(1)}")
    e(f"  v_max_f32 {t_(0)}, {t_(0)}, {t_(1)}")
    e(f"  v_mul_f32 {t_(0)}, s41, {t_(0)}")
    e(f"  v_cmp_gt_f32 vcc, {t_(0)}, {t_(2)}")
    e("  s_nop 1")
    e(f"  s_cbranch_vccz L_skip_{lab}")
    e(f"  v_max_f32 {t_(0)}, v{VM}, {t_(0)}")
    e(f"  v_sub_f32 {t_(1)}, v{VM}, {t_(0)}")
    e(f"  v_exp_f32 {t_(1)}, {t_(1)}")
    e(f"  v_mov_b32 v{VM}, {t_(0)}")
    for r in range(64):
        e(f"  v_mul_f32 v{O0+r}, {t_(1)}, v{O0+r}")
    e(f"  v_mul_f32 v{VL}, {t_(1)}, v{VL}")
    e(f"L_skip_{lab}:")
    for i in range(16):
        e(f"  v_fma_f32 {a(i)}, {a(i)}, s41, -v{VM}")
    for i in range(16):
        e(f"  v_exp_f32 {a(i)}, {a(i)}")
    for i in range(16):
        e(f"  v_fma_f32 {b(i)}, {b(i)}, s41, -v{VM}")
    for i in range(16):
        e(f"  v_exp_f32 {b(i)}, {b(i)}")
        if i % 2 == 1:
            j = i - 1
            e(f"  v_add_f32 {t_(j%4)}, {a(j)}, {a(j+1)}")
            e(f"  v_cvt_pk_bf16_f32 v{P0+j//2}, {a(j)}, {a(j+1)}")
            e(f"  v_add_f32 v{VL}, v{VL}, {t_(j%4)}")
    for i in range(0, 16, 2):
        e(f"  v_add_f32 {t_(i%4)}, {b(i)}, {b(i+1)}")
        e(f"  v_cvt_pk_bf16_f32 v{P0+8+i//2}, {b(i)}, {b(i+1)}")
        e(f"  v_add_f32 v{VL}, v{VL}, {t_(i%4)}")

def kernel():
    e(f".globl {NAME}")
    e(".p2align 8")
    e(f".type {NAME},@function")
    e(f"{NAME}:")
    e("  s_cmp_ge_u32 s2, 256")
    e("  s_cbranch_scc1 L_done")
    e("  s_load_dwordx4 s[4:7], s[0:1], 0      ; q, k")
    e("  s_load_dwordx2 s[8:9], s[0:1], 16     ; v")
    e("  s_load_dwordx4 s[12:15], s[0:1], 24")
    e("  s_load_dwordx2 s[10:11], s[0:1], 40   ; ws")
    e("  v_lshrrev_b32 v1, 6, v0")
    e("  v_and_b32 v2, 63, v0                  ; lane")
    e("  v_readfirstlane_b32 s20, v1")
    e("  s_nop 3")
    e("  s_and_b32 s21, s20, 3                 ; q tile")
    e("  s_lshr_b32 s22, s20, 2                ; group")
    e("  s_lshr_b32 s58, s2, 2                 ; g")
    e("  s_and_b32 s59, s2, 3                  ; split")
    e("  v_and_b32 v3, 31, v2                  ; l&31")
    e("  v_lshrrev_b32 v4, 5, v2               ; h")
    e("  v_and_b32 v5, 15, v2                  ; i = l&15")
    e("  v_lshrrev_b32 v6, 4, v2               ; g = l>>4")
    e("  s_lshl_b32 s36, s20, 3")
    e("  v_add_u32 v8, s36, v6")
    e("  v_and_b32 v9, 15, v8")
    e("  v_xor_b32 v9, v9, v5")
    e(f"  v_lshlrev_b32 v{DK0}, 8, v8")
    e(f"  v_lshl_add_u32 v{DK0}, v9, 4, v{DK0}")
    e("  v_add_u32 v10, 4, v8")
    e("  v_and_b32 v9, 15, v10")
    e("  v_xor_b32 v9, v9, v5")
    e(f"  v_lshlrev_b32 v{DK1}, 8, v10")
    e(f"  v_lshl_add_u32 v{DK1}, v9, 4, v{DK1}")
    e(f"  v_subrev_u32 v{DK1}, 1024, v{DK1}")
    e("  v_lshlrev_b32 v9, 2, v6")
    e("  v_xor_b32 v9, v9, v5")
    e(f"  v_lshlrev_b32 v{DV}, 8, v8")
    e(f"  v_lshl_add_u32 v{DV}, v9, 4, v{DV}")
    e("  s_lshl_b32 s37, s20, 11")
    e("  s_lshl_b32 s23, s2, 17")
    e("  s_waitcnt lgkmcnt(0)")
    e("  s_add_u32 s28, s6, s23")
    e("  s_addc_u32 s29, s7, 0")
    e("  s_mov_b32 s30, 131072")
    e("  s_mov_b32 s31, 0x00020000")
    dma_k(0)
    e("  s_add_u32 s32, s8, s23")
    e("  s_addc_u32 s33, s9, 0")
    e("  s_mov_b32 s34, 131072")
    e("  s_mov_b32 s35, 0x00020000")
    e("  s_lshl_b32 s23, s58, 2")
    e("  s_add_u32 s23, s23, s21")
    e("  s_lshl_b32 s23, s23, 13")
    e("  s_add_u32 s24, s4, s23")
    e("  s_addc_u32 s25, s5, 0")
    e("  s_mov_b32 s26, 8192")
    e("  s_mov_b32 s27, 0x00020000")
    e("  v_lshlrev_b32 v7, 8, v3")
    e("  v_lshl_add_u32 v7, v4, 4, v7")
    for st in range(8):
        e(f"  buffer_load_dwordx4 v[{Q0+4*st}:{Q0+4*st+3}], v7, s[24:27], 0 offen offset:{32*st}")
    e("  s_lshl_b32 s46, s2, 15")
    e("  s_add_u32 s48, s10, s46")
    e("  s_addc_u32 s49, s11, 0")
    e("  s_mov_b32 s50, 32768")
    e("  s_mov_b32 s51, 0x00020000")
    e("  v_lshlrev_b32 v8, 4, v2")
    e("  v_mov_b32 v12, -1")
    e("  v_mov_b32 v13, -1")
    e("  v_mov_b32 v14, -1")
    e("  v_mov_b32 v15, -1")
    for k in range(1, 4):
        e(f"  s_add_u32 s46, s59, {k}")
        e("  s_and_b32 s46, s46, 3")
        e("  s_lshl_b32 s46, s46, 13")
        e("  s_lshl_b32 s45, s20, 10")
        e("  s_add_u32 s46, s46, s45")
        e(f"  buffer_store_dwordx4 v[12:15], v8, s[48:51], s46 offen {PPOL}")
    e("  s_lshl_b32 s46, s2, 10")
    e(f"  s_add_u32 s46, s46, {ML_OFF}")
    e("  s_add_u32 s52, s10, s46")
    e("  s_addc_u32 s53, s11, 0")
    e("  s_cmp_eq_u32 s20, 0")
    e("  s_cselect_b32 s54, 1024, 0")
    e("  s_mov_b32 s55, 0x00020000")
    e(f"  buffer_store_dwordx4 v[12:15], v8, s[52:55], 0 offen {PPOL}")
    dma_k(1); dma_v(0); dma_k(2); dma_v(1); dma_k(3)
    e("  s_lshl_b32 s24, s58, 2")
    e("  s_add_u32 s60, s14, s24")
    e("  s_addc_u32 s61, s15, 0")
    e("  s_mov_b32 s62, 4")
    e("  s_mov_b32 s63, 0x00020000")
    e("  v_lshlrev_b32 v15, 2, v2")
    e("  v_lshlrev_b32 v8, 8, v3")
    for st in range(8):
        e(f"  v_add_u32 v9, {2*st}, v4")
        e("  v_xor_b32 v9, v9, v5")
        e(f"  v_lshl_add_u32 v{KA+st}, v9, 4, v8")
    e("  v_lshrrev_b32 v9, 2, v5")
    e("  v_lshl_add_u32 v10, v4, 2, v9")
    e("  v_lshlrev_b32 v10, 8, v10")
    e("  v_add_u32 v10, 0x14000, v10")
    e("  v_and_b32 v11, 1, v6")
    e("  v_lshl_add_u32 v10, v11, 5, v10")
    e("  v_and_b32 v11, 3, v5")
    e("  v_lshl_add_u32 v10, v11, 3, v10")
    for t in range(4):
        e(f"  v_xor_b32 v11, {t}, v9")
        e(f"  v_lshl_add_u32 v{VA+t}, v11, 6, v10")
    for st in range(8):
        e(f"  v_add_u32 v{KA2[st]}, 0x10000, v{KA+st}")
    for r in range(64):
        e(f"  v_mov_b32 v{O0+r}, 0")
    e(f"  v_mov_b32 v{VM}, 0xff800000")
    e(f"  v_mov_b32 v{VL}, 0")
    e("  s_mov_b32 s41, 0x3e0293ee")
    e("  s_mov_b32 s57, 0x41000000             ; T = 8")
    stamp()
    e("  s_cmp_ge_u32 s22, 1")
    e("  s_cbranch_scc1 L_groupB")
    top(0)
    mfma_phase(0, None)
    for j in range(4):
        top(2*j+1)
        if j == 0:
            e("  s_cmp_lg_u32 s20, 0")
            e("  s_cbranch_scc1 L_noarr")
            e("  v_mov_b32 v14, 1")
            e("  buffer_atomic_add v14, v15, s[60:63], 0 offen sc1")
            e("L_noarr:")
        valu_phase(f"a{j}")
        top(2*j+2); mfma_phase(2*j+2 if j < 3 else None, 2*j)
    t_ = lambda i: f"v{T0+i}"
    e(f"  v_mov_b32 {t_(1)}, v{VL}")
    e("  v_lshlrev_b32 v8, 4, v2")
    e("  s_lshl_b32 s43, s21, 14")
    e("  v_add_u32 v9, s43, v8")
    e("  s_lshl_b32 s43, s21, 9")
    e("  v_lshlrev_b32 v10, 3, v2")
    e("  v_add_u32 v11, s43, v10")
    e(f"  v_add_u32 v11, {XLDS+64}, v11")
    e(f"  v_permlane32_swap_b32 v{VL}, {t_(1)}")
    e(f"  v_add_f32 v{VL}, v{VL}, {t_(1)}")
    e(f"  v_mov_b32 v12, v{VM}")
    e(f"  v_mov_b32 v13, v{VL}")
    e("  s_nop 7")
    e("  ds_write_b64 v11, v[12:13]")
    for qd in range(16):
        e(f"  ds_write_b128 v9, v[{O0+4*qd}:{O0+4*qd+3}] offset:{1024*qd}")
    e("  s_cmp_lg_u32 s20, 0")
    e("  s_cbranch_scc1 L_nowaitA")
    e("L_waitarr:")
    e("  buffer_load_dword v104, v15, s[60:63], 0 offen sc1")
    e("  s_waitcnt vmcnt(0)")
    e("  v_readfirstlane_b32 s46, v104")
    e("  s_nop 3")
    e("  s_cmp_ge_u32 s46, 4")
    e("  s_cbranch_scc1 L_nowaitA")
    e("  s_sleep 8")
    e("  s_branch L_waitarr")
    e("L_nowaitA:")
    e("  s_waitcnt lgkmcnt(0)")
    top(9)
    e("  s_branch L_epi")
    e("L_groupB:")
    nstamp[0] = 1
    top(0)
    top(1); mfma_phase(1, None)
    for j in range(4):
        top(2*j+2); valu_phase(f"b{j}")
        top(2*j+3)
        if j == 3:
            e("  v_lshlrev_b32 v8, 4, v2")
            e("  s_lshl_b32 s43, s21, 14")
            e("  v_add_u32 v9, s43, v8")
            e("  s_lshl_b32 s43, s21, 9")
            e("  v_lshlrev_b32 v10, 3, v2")
            e("  v_add_u32 v11, s43, v10")
            e(f"  v_add_u32 v11, {XLDS+64}, v11")
            e("  ds_read_b64 v[12:13], v11")
            for qd in range(16):
                rr = (112 + 4*qd) if qd < 8 else (48 + 4*(qd-8))
                e(f"  ds_read_b128 v[{rr}:{rr+3}], v9 offset:{1024*qd}")
                if qd == 7: e("  s_waitcnt lgkmcnt(4)")
        mfma_phase(2*j+3 if j < 3 else None, 2*j+1)
    e(f"  v_mov_b32 {t_(1)}, v{VL}")
    e(f"  v_max_f32 v100, v{VM}, v12")
    e("  s_nop 0")
    e(f"  v_permlane32_swap_b32 v{VL}, {t_(1)}")
    e(f"  v_add_f32 v{VL}, v{VL}, {t_(1)}")
    e(f"  v_sub_f32 v101, v{VM}, v100")
    e("  v_sub_f32 v102, v12, v100")
    e("  v_exp_f32 v101, v101                   ; fb")
    e("  v_exp_f32 v102, v102                   ; fa")
    e("  s_nop 0")
    e(f"  v_mul_f32 v103, v101, v{VL}")
    e("  v_fma_f32 v13, v102, v13, v103         ; L")
    e("  v_mov_b32 v12, v100                    ; M")
    e("  s_lshl_b32 s45, s58, 2")
    e("  s_add_u32 s45, s45, s21")
    e("  s_lshl_b32 s46, s45, 15")
    e("  s_lshl_b32 s44, s59, 13")
    e("  s_add_u32 s46, s46, s44")
    e("  s_add_u32 s48, s10, s46")
    e("  s_addc_u32 s49, s11, 0")
    e("  s_mov_b32 s50, 8192")
    e("  s_mov_b32 s51, 0x00020000")
    e("  s_lshl_b32 s46, s45, 10")
    e("  s_lshl_b32 s44, s59, 8")
    e("  s_add_u32 s46, s46, s44")
    e(f"  s_add_u32 s46, s46, {ML_OFF}")
    e("  s_add_u32 s52, s10, s46")
    e("  s_addc_u32 s53, s11, 0")
    e("  s_mov_b32 s54, 256")
    e("  s_mov_b32 s55, 0x00020000")
    e("  v_lshlrev_b32 v14, 3, v2")
    e("  s_mov_b32 s64, 0xfffffffe")
    e("  s_mov_b32 s65, 0xfffeffff")
    for r in range(64):
        ar = (112 + r) if r < 32 else (48 + r - 32)
        e(f"  v_mul_f32 v{O0+r}, v101, v{O0+r}")
        e(f"  v_fma_f32 v{O0+r}, v102, v{ar}, v{O0+r}")
    e("  s_cmp_lg_u32 s59, s21")
    e("  s_cbranch_scc1 L_bst")
    for qd in range(16):
        e(f"  ds_write_b128 v9, v[{O0+4*qd}:{O0+4*qd+3}] offset:{1024*qd}")
    e("  ds_write_b64 v11, v[12:13]")
    e("  s_branch L_bnost")
    e("L_bst:")
    e("  v_min_u32 v12, s64, v12")
    e("  v_min_u32 v13, s64, v13")
    e(f"  buffer_store_dwordx2 v[12:13], v14, s[52:55], 0 offen {PPOL}")
    for p in range(8):
        for r in range(4):
            e(f"  v_cvt_pk_bf16_f32 v{112+4*p+r}, v{O0+8*p+2*r}, v{O0+8*p+2*r+1}")
        for r in range(4):
            e(f"  v_min_u32 v{112+4*p+r}, s65, v{112+4*p+r}")
        e(f"  s_mov_b32 s46, {p*1024}")
        e(f"  buffer_store_dwordx4 v[{112+4*p}:{115+4*p}], v8, s[48:51], s46 offen {PPOL}")
    e("L_bnost:")
    e("  s_waitcnt lgkmcnt(0)")
    e("L_epi:")
    stamp()
    e("  s_barrier")
    stamp()
    e("  v_lshlrev_b32 v8, 4, v2")
    e("  s_lshl_b32 s46, s2, 15")
    e("  s_add_u32 s48, s10, s46")
    e("  s_addc_u32 s49, s11, 0")
    e("  s_mov_b32 s50, 32768")
    e("  s_mov_b32 s51, 0x00020000")
    e("  s_lshl_b32 s46, s2, 10")
    e(f"  s_add_u32 s46, s46, {ML_OFF}")
    e("  s_add_u32 s52, s10, s46")
    e("  s_addc_u32 s53, s11, 0")
    e("  s_mov_b32 s54, 1024")
    e("  s_mov_b32 s55, 0x00020000")
    e("  v_and_b32 v20, 31, v2")
    e("  v_lshlrev_b32 v20, 3, v20")
    e("  s_lshl_b32 s40, s20, 10               ; w*1024")
    for k in range(1, 4):
        e(f"  s_add_u32 s46, s59, {k}")
        e("  s_and_b32 s46, s46, 3")
        e(f"  s_lshl_b32 s{23+k}, s46, 8")
        e("  s_lshl_b32 s46, s46, 13")
        e(f"  s_add_u32 s{26+k}, s46, s40")
    e("  s_lshl_b32 s46, s59, 14")
    e("  s_lshl_b32 s45, s20, 11")
    e("  s_add_u32 s46, s46, s45")
    e("  v_add_u32 v9, s46, v8")
    e("  ds_read_b128 v[108:111], v9")
    e("  ds_read_b128 v[112:115], v9 offset:1024")
    e("  s_lshl_b32 s46, s59, 9")
    e("  v_lshlrev_b32 v10, 3, v2")
    e("  v_add_u32 v10, s46, v10")
    e(f"  v_add_u32 v10, {XLDS+64}, v10")
    e("  ds_read_b64 v[116:117], v10")
    e("  v_lshrrev_b32 v6, 5, v2")
    e("  v_and_b32 v7, 31, v2")
    e("  v_lshlrev_b32 v7, 8, v7")
    e("  v_lshl_add_u32 v7, v6, 4, v7")
    e("  s_lshl_b32 s46, s20, 5")
    e("  v_add_u32 v7, s46, v7")
    e("  s_mov_b32 s61, 0xffff0000")
    e("L_poll:")
    for k in range(1, 4):
        e(f"  buffer_load_dwordx2 v[{22+2*k}:{23+2*k}], v20, s[52:55], s{23+k} offen {LPOL}")
        e(f"  buffer_load_dwordx4 v[{28+4*k}:{31+4*k}], v8, s[48:51], s{26+k} offen {LPOL}")
    e("  s_waitcnt vmcnt(0)")
    e("  v_max_u32 v16, v24, v25")
    for r in list(range(26, 30)) + list(range(32, 44)):
        e(f"  v_max_u32 v16, v16, v{r}")
    e("  v_cmp_eq_u32 vcc, -1, v16")
    e("  s_nop 1")
    e("  s_cbranch_vccz L_polldone")
    e("  s_sleep 1")
    e("  s_branch L_poll")
    e("L_polldone:")
    stamp()
    e("  s_waitcnt lgkmcnt(0)")
    ms = [116, 24, 26, 28]; ls = [117, 25, 27, 29]
    e(f"  v_max_f32 v16, v{ms[0]}, v{ms[1]}")
    e(f"  v_max3_f32 v16, v16, v{ms[2]}, v{ms[3]}")
    for m in ms: e(f"  v_sub_f32 v{m}, v{m}, v16")
    for m in ms: e(f"  v_exp_f32 v{m}, v{m}")
    e("  s_nop 0")
    e(f"  v_mul_f32 v17, v{ms[0]}, v{ls[0]}")
    for i in range(1, 4): e(f"  v_fma_f32 v17, v{ms[i]}, v{ls[i]}, v17")
    e("  v_rcp_f32 v17, v17")
    e("  s_nop 0")
    for m in ms: e(f"  v_mul_f32 v{m}, v{m}, v17")
    for r in range(8): e(f"  v_mul_f32 v{108+r}, v{ms[0]}, v{108+r}")
    for mi, src in ((24, 32), (26, 36), (28, 40)):
        for d in range(4):
            e(f"  v_lshlrev_b32 v18, 16, v{src+d}")
            e(f"  v_and_b32 v19, s61, v{src+d}")
            e(f"  v_fma_f32 v{108+2*d}, v{mi}, v18, v{108+2*d}")
            e(f"  v_fma_f32 v{109+2*d}, v{mi}, v19, v{109+2*d}")
    for jj in range(4):
        e(f"  v_cvt_pk_bf16_f32 v{64+jj}, v{108+2*jj}, v{109+2*jj}")
    e("  s_nop 1")
    e("  v_permlane32_swap_b32 v64, v66")
    e("  v_permlane32_swap_b32 v65, v67")
    e("  s_lshl_b32 s46, s2, 13")
    e("  s_add_u32 s28, s12, s46")
    e("  s_addc_u32 s29, s13, 0")
    e("  s_mov_b32 s30, 8192")
    e("  s_mov_b32 s31, 0x00020000")
    e("  buffer_store_dwordx4 v[64:67], v7, s[28:31], 0 offen")
    if STAMP:
        e("  s_waitcnt vmcnt(0)")
        stamp()
        e("  s_waitcnt lgkmcnt(0)")
        e("  s_lshl_b32 s46, s2, 3")
        e("  s_add_u32 s46, s46, s20")
        e("  s_lshl_b32 s46, s46, 8")
        e("  s_add_u32 s46, s46, 0x2000000")
        e("  s_add_u32 s48, s10, s46")
        e("  s_addc_u32 s49, s11, 0")
        e("  s_mov_b32 s50, 256")
        e("  s_mov_b32 s51, 0x00020000")
        e("  v_mov_b32 v3, 0")
        for i_ in range(nstamp[0]):
            e(f"  v_mov_b32 v4, s{66+2*i_}")
            e(f"  v_mov_b32 v5, s{67+2*i_}")
            e(f"  buffer_store_dwordx2 v[4:5], v3, s[48:51], 0 offen offset:{8*i_}")
    e("L_done:")
    e("  s_endpgm")

e(HEADER.rstrip())
e("; @launch grid=(256,1,1) block=(512,1,1) lds=163840")
e('.amdgcn_target "amdgcn-amd-amdhsa--gfx950"')
e(".text")
kernel()
e('.section .rodata,"a"')
e(".p2align 6")
e(f".amdhsa_kernel {NAME}")
e("  .amdhsa_next_free_vgpr 256")
e(f"  .amdhsa_next_free_sgpr {102 if STAMP else 72}")
e("  .amdhsa_accum_offset 256")
e("  .amdhsa_group_segment_fixed_size 0")
e("  .amdhsa_kernarg_size 48")
e("  .amdhsa_user_sgpr_count 2")
e("  .amdhsa_user_sgpr_kernarg_segment_ptr 1")
e("  .amdhsa_system_sgpr_workgroup_id_x 1")
e(".end_amdhsa_kernel")
open(sys.argv[1] if len(sys.argv) > 1 else "standalone__gqa_softmax__sampling.s", "w").write("\n".join(out) + "\n")
```

```python
import sys, os
POL = os.environ.get("POL", "nt")
PPOL = os.environ.get("PPOL", "sc1")
LPOL = os.environ.get("LPOL", "sc1")
STAMP = int(os.environ.get("STAMP", "0"))
DIAG = int(os.environ.get("DIAG", "0"))
PRETOUCH = int(os.environ.get("PRETOUCH", "0"))
PRIO = int(os.environ.get("PRIO", "1"))
FORCE_ABANDON = int(os.environ.get("FORCE_ABANDON", "0"))
nstamp = [0]
def stamp():
    if STAMP:
        i = nstamp[0]; nstamp[0] += 1
        e(f"  s_memtime s[{60+6+2*i}:{60+7+2*i}]")

HEADER = """; Kernarg layout for this problem (48 bytes, ptrs only, base s[0:1]):
"""
out = []
def e(s=""):
    out.append(s)

Q0 = 16; KF = 48; VF = 80; SA = 112; SB = 128; P0 = 144; O0 = 160
KA2 = [3, 4, 5, 6, 7, 9, 10, 11]
KA = 224; VA = 232; DK0, DK1, DV = 236, 237, 238
VM, VL = 239, 240
T0 = 241
ML_OFF = 16 * 1024 * 1024
FLAG_OFF = 17 * 1024 * 1024
XLDS = 131072
NAME = "standalone__gqa_softmax__sampling_kernel"

def dma_k(t):
    e(f"  s_add_u32 s38, s37, {(t%5)*16384}")
    e("  s_mov_b32 m0, s38")
    e(f"  s_mov_b32 s39, {t*16384}")
    e(f"  buffer_load_dwordx4 v{DK0}, s[28:31], s39 offen {POL} lds")
    e(f"  buffer_load_dwordx4 v{DK1}, s[28:31], s39 offen offset:1024 {POL} lds")
def dma_v(t):
    e(f"  s_add_u32 s38, s37, {81920+(t%5)*16384}")
    e("  s_mov_b32 m0, s38")
    e(f"  s_mov_b32 s39, {t*16384}")
    e(f"  buffer_load_dwordx4 v{DV}, s[32:35], s39 offen {POL} lds")
    e(f"  buffer_load_dwordx4 v{DV}, s[32:35], s39 offen offset:1024 {POL} lds")

WAITS = {0: 10, 5: 10, 6: 8, 7: 4, 8: 2, 9: 0}
def top(i):
    n = WAITS.get(i, 12)
    e(f"  ; ---- interval {i} ----")
    e(f"  s_waitcnt vmcnt({n})")
    e("  s_barrier")
    if i in (0, 1, 9): stamp()
    if i + 4 <= 7: dma_k(i + 4)
    if i + 2 <= 7: dma_v(i + 2)

def vread1(slot, s, idx):
    t, ee = idx >> 1, idx & 1
    bb = VF + (s & 1)*16 + t*4 + 2*ee
    base = VA
    if slot >= 65536:
        base = T0 + 0; slot -= 65536
    e(f"  ds_read_b64_tr_b16 v[{bb}:{bb+1}], v{base+t} offset:{slot+(16*s+8*ee)*256}")
def vreads(slot, s):
    for idx in range(8): vread1(slot, s, idx)
def pvm(s):
    for t in range(4):
        bb = VF + (s & 1)*16 + t*4
        e(f"  v_mfma_f32_32x32x16_bf16 v[{O0+16*t}:{O0+16*t+15}], v[{bb}:{bb+3}], v[{P0+4*s}:{P0+4*s+3}], v[{O0+16*t}:{O0+16*t+15}]")

def mfma_phase(tk, tv):
    if PRIO: e("  s_setprio 1")
    vs = None if tv is None else (tv % 5) * 16384
    if vs is not None and vs >= 65536:
        for t in range(4): e(f"  v_add_u32 v{T0+t}, 0x10000, v{VA+t}")
    if tk is not None:
        slot = (tk % 5) * 16384
        kreg = lambda st: KA + st
        if slot >= 65536:
            slot -= 65536
            kreg = lambda st: KA2[st]
        for st in range(8):
            e(f"  ds_read_b128 v[{KF+4*st}:{KF+4*st+3}], v{kreg(st)} offset:{slot}")
        for st in range(8):
            e("  s_waitcnt lgkmcnt(7)")
            c = "0" if st == 0 else f"v[{SA}:{SA+15}]"
            e(f"  v_mfma_f32_32x32x16_bf16 v[{SA}:{SA+15}], v[{KF+4*st}:{KF+4*st+3}], v[{Q0+4*st}:{Q0+4*st+3}], {c}")
            e(f"  ds_read_b128 v[{KF+4*st}:{KF+4*st+3}], v{kreg(st)} offset:{slot+8192}")
        for st in range(8):
            if tv is not None:
                e(f"  s_waitcnt lgkmcnt({min(7+st, 13)})" if st < 7 else "  s_waitcnt lgkmcnt(13)")
            else:
                e(f"  s_waitcnt lgkmcnt({7-st})")
            c = "0" if st == 0 else f"v[{SB}:{SB+15}]"
            e(f"  v_mfma_f32_32x32x16_bf16 v[{SB}:{SB+15}], v[{KF+4*st}:{KF+4*st+3}], v[{Q0+4*st}:{Q0+4*st+3}], {c}")
            if tv is not None:
                vread1(vs, st >> 2, 2*(st & 3)); vread1(vs, st >> 2, 2*(st & 3) + 1)
    elif tv is not None:
        vreads(vs, 0); vreads(vs, 1)
    if tv is not None:
        e("  s_waitcnt lgkmcnt(8)"); pvm(0)
        vreads(vs, 2)
        e("  s_waitcnt lgkmcnt(8)"); pvm(1)
        vreads(vs, 3)
        e("  s_waitcnt lgkmcnt(8)"); pvm(2)
        e("  s_waitcnt lgkmcnt(0)"); pvm(3)
    if PRIO: e("  s_setprio 0")

def valu_phase(lab):
    a = lambda i: f"v{SA+i}"
    b = lambda i: f"v{SB+i}"
    t_ = lambda i: f"v{T0+i}"
    e(f"  v_max3_f32 {t_(0)}, {a(0)}, {a(1)}, {a(2)}")
    e(f"  v_max3_f32 {t_(1)}, {a(3)}, {a(4)}, {a(5)}")
    e(f"  v_max3_f32 {t_(2)}, {a(6)}, {a(7)}, {a(8)}")
    e(f"  v_max3_f32 {t_(3)}, {a(9)}, {a(10)}, {a(11)}")
    e(f"  v_max3_f32 {t_(4)}, {a(12)}, {a(13)}, {a(14)}")
    e(f"  v_max3_f32 {t_(0)}, {t_(0)}, {t_(1)}, {a(15)}")
    e(f"  v_max3_f32 {t_(2)}, {t_(2)}, {t_(3)}, {t_(4)}")
    e(f"  v_max3_f32 {t_(1)}, {b(0)}, {b(1)}, {b(2)}")
    e(f"  v_max3_f32 {t_(3)}, {b(3)}, {b(4)}, {b(5)}")
    e(f"  v_max3_f32 {t_(4)}, {b(6)}, {b(7)}, {b(8)}")
    e(f"  v_max3_f32 {t_(5)}, {b(9)}, {b(10)}, {b(11)}")
    e(f"  v_max3_f32 {t_(6)}, {b(12)}, {b(13)}, {b(14)}")
    e(f"  v_max3_f32 {t_(0)}, {t_(0)}, {t_(2)}, {b(15)}")
    e(f"  v_max3_f32 {t_(1)}, {t_(1)}, {t_(3)}, {t_(4)}")
    e(f"  v_max3_f32 {t_(0)}, {t_(0)}, {t_(5)}, {t_(6)}")
    e(f"  v_max_f32 {t_(0)}, {t_(0)}, {t_(1)}")
    e(f"  v_mov_b32 {t_(1)}, {t_(0)}")
    e(f"  v_add_f32 {t_(2)}, s57, v{VM}")
    e("  s_nop 0")
    e(f"  v_permlane32_swap_b32 {t_(0)}, {t_(1)}")
    e(f"  v_max_f32 {t_(0)}, {t_(0)}, {t_(1)}")
    e(f"  v_mul_f32 {t_(0)}, s41, {t_(0)}")
    e(f"  v_cmp_gt_f32 vcc, {t_(0)}, {t_(2)}")
    e("  s_nop 1")
    e(f"  s_cbranch_vccz L_skip_{lab}")
    e(f"  v_max_f32 {t_(0)}, v{VM}, {t_(0)}")
    e(f"  v_sub_f32 {t_(1)}, v{VM}, {t_(0)}")
    e(f"  v_exp_f32 {t_(1)}, {t_(1)}")
    e(f"  v_mov_b32 v{VM}, {t_(0)}")
    for r in range(64):
        e(f"  v_mul_f32 v{O0+r}, {t_(1)}, v{O0+r}")
    e(f"  v_mul_f32 v{VL}, {t_(1)}, v{VL}")
    e(f"L_skip_{lab}:")
    for i in range(16):
        e(f"  v_fma_f32 {a(i)}, {a(i)}, s41, -v{VM}")
    for i in range(16):
        e(f"  v_exp_f32 {a(i)}, {a(i)}")
    for i in range(16):
        e(f"  v_fma_f32 {b(i)}, {b(i)}, s41, -v{VM}")
    for i in range(16):
        e(f"  v_exp_f32 {b(i)}, {b(i)}")
        if i % 2 == 1:
            j = i - 1
            e(f"  v_add_f32 {t_(j%4)}, {a(j)}, {a(j+1)}")
            e(f"  v_cvt_pk_bf16_f32 v{P0+j//2}, {a(j)}, {a(j+1)}")
            e(f"  v_add_f32 v{VL}, v{VL}, {t_(j%4)}")
    for i in range(0, 16, 2):
        e(f"  v_add_f32 {t_(i%4)}, {b(i)}, {b(i+1)}")
        e(f"  v_cvt_pk_bf16_f32 v{P0+8+i//2}, {b(i)}, {b(i+1)}")
        e(f"  v_add_f32 v{VL}, v{VL}, {t_(i%4)}")

def kernel():
    e(f".globl {NAME}")
    e(".p2align 8")
    e(f".type {NAME},@function")
    e(f"{NAME}:")
    e("  s_cmp_ge_u32 s2, 256")
    e("  s_cbranch_scc1 L_done")
    if DIAG:
        e("  s_memtime s[90:91]")
        e("  s_memrealtime s[92:93]")
    e("  s_load_dwordx4 s[4:7], s[0:1], 0      ; q, k")
    e("  s_load_dwordx2 s[8:9], s[0:1], 16     ; v")
    e("  s_load_dwordx4 s[12:15], s[0:1], 24")
    e("  s_load_dwordx2 s[10:11], s[0:1], 40   ; ws")
    e("  v_lshrrev_b32 v1, 6, v0")
    e("  v_and_b32 v2, 63, v0                  ; lane")
    e("  v_readfirstlane_b32 s20, v1")
    e("  s_nop 3")
    e("  s_and_b32 s21, s20, 3                 ; q tile")
    e("  s_lshr_b32 s22, s20, 2                ; group")
    e("  s_lshr_b32 s58, s2, 2                 ; g")
    e("  s_and_b32 s59, s2, 3                  ; split")
    e("  v_and_b32 v3, 31, v2                  ; l&31")
    e("  v_lshrrev_b32 v4, 5, v2               ; h")
    e("  v_and_b32 v5, 15, v2                  ; i = l&15")
    e("  v_lshrrev_b32 v6, 4, v2               ; g = l>>4")
    e("  s_lshl_b32 s36, s20, 3")
    e("  v_add_u32 v8, s36, v6")
    e("  v_and_b32 v9, 15, v8")
    e("  v_xor_b32 v9, v9, v5")
    e(f"  v_lshlrev_b32 v{DK0}, 8, v8")
    e(f"  v_lshl_add_u32 v{DK0}, v9, 4, v{DK0}")
    e("  v_add_u32 v10, 4, v8")
    e("  v_and_b32 v9, 15, v10")
    e("  v_xor_b32 v9, v9, v5")
    e(f"  v_lshlrev_b32 v{DK1}, 8, v10")
    e(f"  v_lshl_add_u32 v{DK1}, v9, 4, v{DK1}")
    e(f"  v_subrev_u32 v{DK1}, 1024, v{DK1}")
    e("  v_lshlrev_b32 v9, 2, v6")
    e("  v_xor_b32 v9, v9, v5")
    e(f"  v_lshlrev_b32 v{DV}, 8, v8")
    e(f"  v_lshl_add_u32 v{DV}, v9, 4, v{DV}")
    e("  s_lshl_b32 s37, s20, 11")
    e("  s_lshl_b32 s23, s2, 17")
    e("  s_waitcnt lgkmcnt(0)")
    if DIAG: e("  s_memtime s[86:87]")
    e("  s_lshr_b32 s24, s58, 2")
    e("  s_lshl_b32 s24, s24, 2")
    e("  s_add_u32 s24, s24, 192")
    e("  s_and_b32 s65, s58, 3")
    e("  s_lshl_b32 s65, s65, 3")
    e("  s_add_u32 s60, s14, s24")
    e("  s_addc_u32 s61, s15, 0")
    e("  s_mov_b32 s62, 4")
    e("  s_mov_b32 s63, 0x00020000")
    e("  v_lshlrev_b32 v15, 2, v2")
    e("  s_cmp_lg_u32 s20, 0")
    e("  s_cbranch_scc1 L_noarrive")
    e("  s_lshl_b32 s24, s2, 7")
    e(f"  s_add_u32 s24, s24, {FLAG_OFF}")
    e("  s_add_u32 s16, s10, s24")
    e("  s_addc_u32 s17, s11, 0")
    e("  s_mov_b32 s18, 4")
    e("  s_mov_b32 s19, 0x00020000")
    e("  v_mov_b32 v14, 0")
    e("  buffer_store_dword v14, v15, s[16:19], 0 offen sc1")
    e("L_noarrive:")
    e("  s_add_u32 s28, s6, s23")
    e("  s_addc_u32 s29, s7, 0")
    e("  s_mov_b32 s30, 131072")
    e("  s_mov_b32 s31, 0x00020000")
    if PRETOUCH:
        e("  s_add_u32 s32, s8, s23")
        e("  s_addc_u32 s33, s9, 0")
        e("  s_mov_b32 s34, 131072")
        e("  s_mov_b32 s35, 0x00020000")
        e("  v_lshlrev_b32 v12, 12, v2")
        e("  buffer_load_dword v13, v12, s[28:31], 0 offen")
        e("  buffer_load_dword v13, v12, s[32:35], 0 offen")
    if DIAG: e("  s_memtime s[70:71]")
    dma_k(0)
    if DIAG: e("  s_memtime s[72:73]")
    e("  s_add_u32 s32, s8, s23")
    e("  s_addc_u32 s33, s9, 0")
    e("  s_mov_b32 s34, 131072")
    e("  s_mov_b32 s35, 0x00020000")
    e("  s_lshl_b32 s23, s58, 2")
    e("  s_add_u32 s23, s23, s21")
    e("  s_lshl_b32 s23, s23, 13")
    e("  s_add_u32 s24, s4, s23")
    e("  s_addc_u32 s25, s5, 0")
    e("  s_mov_b32 s26, 8192")
    e("  s_mov_b32 s27, 0x00020000")
    e("  v_lshlrev_b32 v7, 8, v3")
    e("  v_lshl_add_u32 v7, v4, 4, v7")
    for st in range(8):
        e(f"  buffer_load_dwordx4 v[{Q0+4*st}:{Q0+4*st+3}], v7, s[24:27], 0 offen offset:{32*st}")
    if DIAG: e("  s_memtime s[74:75]")
    dma_k(1)
    if DIAG: e("  s_memtime s[76:77]")
    dma_v(0)
    if DIAG: e("  s_memtime s[78:79]")
    dma_k(2); dma_v(1); dma_k(3)
    if DIAG: e("  s_memtime s[84:85]")
    e("  v_lshlrev_b32 v8, 8, v3")
    for st in range(8):
        e(f"  v_add_u32 v9, {2*st}, v4")
        e("  v_xor_b32 v9, v9, v5")
        e(f"  v_lshl_add_u32 v{KA+st}, v9, 4, v8")
    e("  v_lshrrev_b32 v9, 2, v5")
    e("  v_lshl_add_u32 v10, v4, 2, v9")
    e("  v_lshlrev_b32 v10, 8, v10")
    e("  v_add_u32 v10, 0x14000, v10")
    e("  v_and_b32 v11, 1, v6")
    e("  v_lshl_add_u32 v10, v11, 5, v10")
    e("  v_and_b32 v11, 3, v5")
    e("  v_lshl_add_u32 v10, v11, 3, v10")
    for t in range(4):
        e(f"  v_xor_b32 v11, {t}, v9")
        e(f"  v_lshl_add_u32 v{VA+t}, v11, 6, v10")
    for st in range(8):
        e(f"  v_add_u32 v{KA2[st]}, 0x10000, v{KA+st}")
    for r in range(64):
        e(f"  v_mov_b32 v{O0+r}, 0")
    e(f"  v_mov_b32 v{VM}, 0xff800000")
    e(f"  v_mov_b32 v{VL}, 0")
    e("  s_mov_b32 s41, 0x3e0293ee")
    e("  s_mov_b32 s57, 0x41000000             ; T = 8")
    stamp()
    e("  s_cmp_ge_u32 s22, 1")
    e("  s_cbranch_scc1 L_groupB")
    e("  ; ---- interval 0 (A) ----")
    e("  s_waitcnt vmcnt(10)")
    e("  s_cmp_lg_u32 s20, 0")
    e("  s_cbranch_scc1 L_noarr2")
    e("  s_lshl_b32 s24, 1, s65")
    e("  v_mov_b32 v14, s24")
    e("  buffer_atomic_add v14, v15, s[60:63], 0 offen sc1")
    e("L_noarr2:")
    e("  s_barrier")
    if DIAG: e("  s_memtime s[88:89]")
    stamp()
    dma_k(4); dma_v(2)
    mfma_phase(0, None)
    for j in range(4):
        top(2*j+1); valu_phase(f"a{j}")
        top(2*j+2); mfma_phase(2*j+2 if j < 3 else None, 2*j)
    top(9)
    e("  s_branch L_epi")
    e("L_groupB:")
    nstamp[0] = 1
    top(0)
    top(1); mfma_phase(1, None)
    for j in range(4):
        top(2*j+2); valu_phase(f"b{j}")
        top(2*j+3); mfma_phase(2*j+3 if j < 3 else None, 2*j+1)
    e("L_epi:")
    stamp()
    if DIAG: e("  s_memtime s[98:99]")
    t_ = lambda i: f"v{T0+i}"
    e("  s_cmp_lg_u32 s20, 0")
    e("  s_cbranch_scc1 L_nard")
    e("  buffer_load_dword v104, v15, s[60:63], 0 offen sc1")
    e("L_nard:")
    e(f"  v_mov_b32 {t_(1)}, v{VL}")
    e("  s_nop 7")
    e("  s_nop 7")
    e(f"  v_permlane32_swap_b32 v{VL}, {t_(1)}")
    e(f"  v_add_f32 v{VL}, v{VL}, {t_(1)}")
    e("  s_barrier")
    stamp()
    e("  s_lshl_b32 s43, s20, 14")
    e("  v_lshlrev_b32 v8, 4, v2")
    e("  v_add_u32 v9, s43, v8")
    for qd in range(16):
        e(f"  ds_write_b128 v9, v[{O0+4*qd}:{O0+4*qd+3}] offset:{1024*qd}")
    e("  s_lshl_b32 s43, s20, 9")
    e("  v_lshlrev_b32 v10, 3, v2")
    e("  v_add_u32 v11, s43, v10")
    e(f"  v_add_u32 v11, {XLDS+64}, v11")
    e(f"  v_mov_b32 v12, v{VM}")
    e(f"  v_mov_b32 v13, v{VL}")
    e("  ds_write_b64 v11, v[12:13]")
    e("  s_cmp_lg_u32 s20, 0")
    e("  s_cbranch_scc1 L_nard2")
    e("  s_waitcnt vmcnt(0)")
    e("  v_readfirstlane_b32 s46, v104")
    e("  s_nop 3")
    e("  s_lshr_b32 s46, s46, s65")
    e("  s_and_b32 s46, s46, 0xff")
    if FORCE_ABANDON:
        e("  s_cmp_lg_u32 s59, 1")
    else:
        e("  s_cmp_lg_u32 s46, 4")
    e("  s_cselect_b32 s47, 2, 1")
    e(f"  v_mov_b32 v105, {XLDS}")
    e("  v_mov_b32 v106, s47")
    e("  ds_write_b32 v105, v106")
    e("L_nard2:")
    e("  s_waitcnt lgkmcnt(0)")
    stamp()
    e("  s_barrier")
    stamp()
    e(f"  v_mov_b32 v105, {XLDS}")
    e("  ds_read_b32 v106, v105")
    e("  s_lshl_b32 s43, s20, 11")
    e("  v_add_u32 v9, s43, v8")
    e(f"  v_add_u32 v10, {XLDS+64}, v10")
    e("  s_lshl_b32 s46, s2, 15")
    e("  s_add_u32 s48, s10, s46")
    e("  s_addc_u32 s49, s11, 0")
    e("  s_mov_b32 s50, 32768")
    e("  s_mov_b32 s51, 0x00020000")
    e("  s_lshl_b32 s40, s20, 10               ; w*1024")
    e("  s_waitcnt lgkmcnt(0)")
    e("  v_readfirstlane_b32 s47, v106")
    def rd(j):
        rb = 16 + 16*j; mb = 80 + 4*j
        e(f"  ds_read_b64 v[{mb}:{mb+1}], v10 offset:{j*512}")
        e(f"  ds_read_b64 v[{mb+2}:{mb+3}], v10 offset:{(j+4)*512}")
        e(f"  v_add_u32 v14, {j*16384}, v9")
        e(f"  ds_read_b128 v[{rb}:{rb+3}], v14")
        e(f"  ds_read_b128 v[{rb+4}:{rb+7}], v14 offset:1024")
        e(f"  v_add_u32 v14, {(j+4)*16384}, v9")
        e(f"  ds_read_b128 v[{rb+8}:{rb+11}], v14")
        e(f"  ds_read_b128 v[{rb+12}:{rb+15}], v14 offset:1024")
    rd(0); rd(1)
    for j in range(4):
        rb = 16 + 16*j; mb = 80 + 4*j
        e(f"  s_waitcnt lgkmcnt({6 if j < 3 else 0})")
        if j + 2 < 4: rd(j + 2)
        e(f"  v_max_f32 v100, v{mb}, v{mb+2}")
        e(f"  v_sub_f32 v101, v{mb}, v100")
        e(f"  v_sub_f32 v102, v{mb+2}, v100")
        e("  v_exp_f32 v101, v101")
        e("  v_exp_f32 v102, v102")
        e("  s_nop 0")
        e(f"  v_mul_f32 v103, v101, v{mb+1}")
        e(f"  v_fma_f32 v{mb+1}, v102, v{mb+3}, v103     ; L")
        e(f"  v_mov_b32 v{mb}, v100                       ; M")
        for r in range(8):
            e(f"  v_mul_f32 v{rb+r}, v101, v{rb+r}")
            e(f"  v_fma_f32 v{rb+r}, v102, v{rb+8+r}, v{rb+r}")
        for r in range(4):
            e(f"  v_cvt_pk_bf16_f32 v{rb+8+r}, v{rb+2*r}, v{rb+2*r+1}")
        e(f"  s_cmp_lg_u32 s59, {j}")
        e(f"  s_cbranch_scc1 L_st{j}")
        for r in range(8):
            e(f"  v_mov_b32 v{108+r}, v{rb+r}")
        e(f"  v_mov_b32 v116, v{mb}")
        e(f"  v_mov_b32 v117, v{mb+1}")
        e("  s_cmp_eq_u32 s47, 1")
        e(f"  s_cbranch_scc1 L_nost{j}")
        e(f"L_st{j}:")
        e(f"  s_add_u32 s46, s40, {j*8192}")
        e(f"  buffer_store_dwordx4 v[{rb+8}:{rb+11}], v8, s[48:51], s46 offen {PPOL}")
        e(f"L_nost{j}:")
    e("  s_cmp_lg_u32 s20, 0")
    e("  s_cbranch_scc1 L_noml")
    e("  s_lshl_b32 s46, s2, 10")
    e(f"  s_add_u32 s46, s46, {ML_OFF}")
    e("  s_add_u32 s52, s10, s46")
    e("  s_addc_u32 s53, s11, 0")
    e("  v_lshlrev_b32 v14, 3, v2")
    e("  s_mov_b32 s55, 0x00020000")
    e("  s_mov_b32 s54, 1024")
    e("  v_cmp_gt_u32 vcc, 32, v2")
    e("  s_and_saveexec_b64 s[44:45], vcc")
    for j in range(4):
        mb = 80 + 4*j
        e(f"  buffer_store_dwordx2 v[{mb}:{mb+1}], v14, s[52:55], 0 offen offset:{j*256} {PPOL}")
    e("  s_mov_b64 exec, s[44:45]")
    e("L_noml:")
    stamp()
    e("  s_waitcnt vmcnt(0)")
    stamp()
    e("  s_barrier")
    stamp()
    e("  s_cmp_lg_u32 s20, 0")
    e("  s_cbranch_scc1 L_w_notzero")
    e("  v_mov_b32 v104, s47")
    e("  buffer_store_dword v104, v15, s[16:19], 0 offen sc1")
    e("  s_cmp_eq_u32 s47, 2")
    e("  s_cbranch_scc1 L_w_notzero")
    e("  s_lshl_b32 s24, s58, 9")
    e(f"  s_add_u32 s24, s24, {FLAG_OFF}")
    e("  s_add_u32 s16, s10, s24")
    e("  s_addc_u32 s17, s11, 0")
    e("  s_mov_b32 s18, 512")
    e("  v_lshlrev_b32 v105, 7, v2")
    e("L_poll:")
    e("  buffer_load_dword v104, v105, s[16:19], 0 offen sc1")
    e("  s_waitcnt vmcnt(0)")
    e("  v_readlane_b32 s24, v104, 0")
    e("  v_readlane_b32 s25, v104, 1")
    e("  v_readlane_b32 s26, v104, 2")
    e("  v_readlane_b32 s27, v104, 3")
    e("  s_nop 3")
    e("  s_min_u32 s44, s24, s25")
    e("  s_min_u32 s45, s26, s27")
    e("  s_min_u32 s44, s44, s45")
    e("  s_cmp_eq_u32 s44, 0")
    e("  s_cbranch_scc0 L_polldone")
    e("  s_sleep 1")
    e("  s_branch L_poll")
    e("L_polldone:")
    e("  s_mov_b32 s44, 0")
    e("  s_mov_b32 s45, 0")
    for sp, r in enumerate(("s24", "s25", "s26", "s27")):
        e(f"  s_cmp_eq_u32 {r}, 2")
        e(f"  s_cselect_b32 s46, {1 << sp}, 0")
        e(f"  s_cselect_b32 s42, 0, {1 << sp}")
        e("  s_or_b32 s44, s44, s46")
        e("  s_or_b32 s45, s45, s42")
    e("  s_ff1_i32_b32 s46, s45")
    e("  s_cmp_eq_u32 s46, s59")
    e("  s_cselect_b32 s42, s44, 0")
    e(f"  v_mov_b32 v105, {XLDS+4}")
    e("  v_mov_b32 v106, s42")
    e("  ds_write_b32 v105, v106")
    e("  s_waitcnt lgkmcnt(0)")
    e("L_w_notzero:")
    e("  s_barrier")
    e("  s_cmp_eq_u32 s47, 2")
    e("  s_cbranch_scc1 L_done")
    stamp()
    e("  s_lshl_b32 s46, s58, 17")
    e("  s_add_u32 s48, s10, s46")
    e("  s_addc_u32 s49, s11, 0")
    e("  s_mov_b32 s50, 131072")
    e("  s_lshl_b32 s46, s58, 12")
    e(f"  s_add_u32 s46, s46, {ML_OFF}")
    e("  s_add_u32 s52, s10, s46")
    e("  s_addc_u32 s53, s11, 0")
    e("  s_mov_b32 s54, 4096")
    e("  s_mov_b32 s55, 0x00020000")
    e("  v_and_b32 v20, 31, v2")
    e("  v_lshlrev_b32 v20, 3, v20")
    e("  s_lshl_b32 s44, s59, 8                 ; j*256")
    e("  s_lshl_b32 s45, s59, 13")
    e("  s_add_u32 s45, s45, s40                ; j*8192 + w*1024")
    for k in range(1, 4):
        e(f"  s_add_u32 s46, s59, {k}")
        e("  s_and_b32 s46, s46, 3")
        e("  s_lshl_b32 s24, s46, 10")
        e("  s_add_u32 s24, s24, s44")
        e(f"  buffer_load_dwordx2 v[{22+2*k}:{23+2*k}], v20, s[52:55], s24 offen {LPOL}")
        e("  s_lshl_b32 s24, s46, 15")
        e("  s_add_u32 s24, s24, s45")
        e(f"  buffer_load_dwordx4 v[{28+4*k}:{31+4*k}], v8, s[48:51], s24 offen {LPOL}")
    e(f"  v_mov_b32 v105, {XLDS+4}")
    e("  ds_read_b32 v106, v105")
    e("  v_lshrrev_b32 v6, 5, v2")
    e("  v_and_b32 v7, 31, v2")
    e("  v_lshlrev_b32 v7, 8, v7")
    e("  v_lshl_add_u32 v7, v6, 4, v7")
    e("  s_lshl_b32 s46, s20, 5")
    e("  v_add_u32 v7, s46, v7")
    e("  s_mov_b32 s61, 0xffff0000")
    e("  s_waitcnt lgkmcnt(0)")
    e("  v_readfirstlane_b32 s42, v106")
    def fin(ms, ls, first_fp32, srcs, jreg):
        e(f"  v_max_f32 v16, v{ms[0]}, v{ms[1]}")
        e(f"  v_max3_f32 v16, v16, v{ms[2]}, v{ms[3]}")
        for m in ms: e(f"  v_sub_f32 v{m}, v{m}, v16")
        for m in ms: e(f"  v_exp_f32 v{m}, v{m}")
        e("  s_nop 0")
        e(f"  v_mul_f32 v17, v{ms[0]}, v{ls[0]}")
        for i in range(1, 4): e(f"  v_fma_f32 v17, v{ms[i]}, v{ls[i]}, v17")
        e("  v_rcp_f32 v17, v17")
        e("  s_nop 0")
        for m in ms: e(f"  v_mul_f32 v{m}, v{m}, v17")
        if first_fp32:
            for r in range(8): e(f"  v_mul_f32 v{108+r}, v{ms[0]}, v{108+r}")
        for idx, (mi, src) in enumerate(srcs):
            for d in range(4):
                e(f"  v_lshlrev_b32 v18, 16, v{src+d}")
                e(f"  v_and_b32 v19, s61, v{src+d}")
                if idx == 0 and not first_fp32:
                    e(f"  v_mul_f32 v{108+2*d}, v{mi}, v18")
                    e(f"  v_mul_f32 v{109+2*d}, v{mi}, v19")
                else:
                    e(f"  v_fma_f32 v{108+2*d}, v{mi}, v18, v{108+2*d}")
                    e(f"  v_fma_f32 v{109+2*d}, v{mi}, v19, v{109+2*d}")
        for jj in range(4):
            e(f"  v_cvt_pk_bf16_f32 v{64+jj}, v{108+2*jj}, v{109+2*jj}")
        e("  s_nop 1")
        e("  v_permlane32_swap_b32 v64, v66")
        e("  v_permlane32_swap_b32 v65, v67")
        e("  s_lshl_b32 s46, s58, 2")
        e(f"  s_add_u32 s46, s46, {jreg}")
        e("  s_lshl_b32 s46, s46, 13")
        e("  s_add_u32 s28, s12, s46")
        e("  s_addc_u32 s29, s13, 0")
        e("  s_mov_b32 s30, 8192")
        e("  s_mov_b32 s31, 0x00020000")
        e("  buffer_store_dwordx4 v[64:67], v7, s[28:31], 0 offen")
    e("  s_waitcnt vmcnt(0)")
    fin([116, 24, 26, 28], [117, 25, 27, 29], True, [(24, 32), (26, 36), (28, 40)], "s59")
    e("L_finloop:")
    e("  s_cmp_eq_u32 s42, 0")
    e("  s_cbranch_scc1 L_finend")
    e("  s_ff1_i32_b32 s44, s42                ; j")
    e("  s_lshl_b32 s45, 1, s44")
    e("  s_andn2_b32 s42, s42, s45")
    e("  s_lshl_b32 s45, s44, 8")
    for sp in range(4):
        e(f"  buffer_load_dwordx2 v[{24+2*sp}:{25+2*sp}], v20, s[52:55], s45 offen offset:{1024*sp} {LPOL}")
    e("  s_lshl_b32 s45, s44, 13")
    e("  s_add_u32 s45, s45, s40")
    for sp in range(4):
        e(f"  buffer_load_dwordx4 v[{32+4*sp}:{35+4*sp}], v8, s[48:51], s45 offen {LPOL}")
        if sp < 3: e("  s_add_u32 s45, s45, 32768")
    e("  s_waitcnt vmcnt(0)")
    fin([24, 26, 28, 30], [25, 27, 29, 31], False, [(24, 32), (26, 36), (28, 40), (30, 44)], "s44")
    e("  s_branch L_finloop")
    e("L_finend:")
    if DIAG:
        e("  s_waitcnt vmcnt(0)")
        e("  s_memtime s[94:95]")
        e("  s_memrealtime s[96:97]")
        e("  s_waitcnt lgkmcnt(0)")
        e("  s_sub_u32 s94, s94, s90")
        e("  s_sub_u32 s96, s96, s92")
        e("  s_cmp_lg_u32 s20, 0")
        e("  s_cbranch_scc1 L_done")
        e("  s_cmp_ge_u32 s2, 2")
        e("  s_cbranch_scc1 L_done")
        e("  s_lshl_b32 s46, s2, 5")
        e("  s_add_u32 s48, s14, s46")
        e("  s_addc_u32 s49, s15, 0")
        e("  s_mov_b32 s50, 32")
        e("  s_mov_b32 s51, 0x00020000")
        for i_, r in enumerate((86, 70, 72, 74, 76, 78, 84, 88)):
            e(f"  s_sub_u32 s{r}, s{r}, s90")
            e(f"  v_mov_b32 v{4+i_}, s{r}")
        e("  v_lshlrev_b32 v3, 5, v2")
        e("  buffer_store_dwordx4 v[4:7], v3, s[48:51], 0 offen")
        e("  buffer_store_dwordx4 v[8:11], v3, s[48:51], 0 offen offset:16")
    if STAMP:
        e("  s_waitcnt vmcnt(0)")
        stamp()
        e("  s_waitcnt lgkmcnt(0)")
        e("  s_lshl_b32 s46, s2, 3")
        e("  s_add_u32 s46, s46, s20")
        e("  s_lshl_b32 s46, s46, 8")
        e("  s_add_u32 s46, s46, 0x2000000")
        e("  s_add_u32 s48, s10, s46")
        e("  s_addc_u32 s49, s11, 0")
        e("  s_mov_b32 s50, 256")
        e("  s_mov_b32 s51, 0x00020000")
        e("  v_mov_b32 v3, 0")
        for i_ in range(nstamp[0]):
            e(f"  v_mov_b32 v4, s{66+2*i_}")
            e(f"  v_mov_b32 v5, s{67+2*i_}")
            e(f"  buffer_store_dwordx2 v[4:5], v3, s[48:51], 0 offen offset:{8*i_}")
    e("L_done:")
    e("  s_endpgm")

e(HEADER.rstrip())
e(f"; @launch grid=(256,1,1) block=(512,1,1) lds=163840")
e('.amdgcn_target "amdgcn-amd-amdhsa--gfx950"')
e(".text")
kernel()
e('.section .rodata,"a"')
e(".p2align 6")
e(f".amdhsa_kernel {NAME}")
e("  .amdhsa_next_free_vgpr 256")
e(f"  .amdhsa_next_free_sgpr {102 if (STAMP or DIAG) else 72}")
e("  .amdhsa_accum_offset 256")
e("  .amdhsa_group_segment_fixed_size 0")
e("  .amdhsa_kernarg_size 48")
e("  .amdhsa_user_sgpr_count 2")
e("  .amdhsa_user_sgpr_kernarg_segment_ptr 1")
e("  .amdhsa_system_sgpr_workgroup_id_x 1")
e(".end_amdhsa_kernel")
open(sys.argv[1] if len(sys.argv) > 1 else "standalone__gqa_softmax__sampling.s", "w").write("\n".join(out) + "\n")
```
